```python
import torch

def _softmax(x, axis=-1):
    return torch.softmax(x, dim=axis)
def _gelu(x):
    return torch.nn.functional.gelu(x, approximate="tanh")
def _silu(x):
    return torch.nn.functional.silu(x)
def _sigmoid(x):
    return torch.sigmoid(x)
def _layernorm(x, axis=-1, eps=1e-5):
    m = x.mean(dim=axis, keepdim=True)
    v = x.var(dim=axis, keepdim=True, unbiased=False)
    return (x - m) / torch.sqrt(v + eps)
def _scatter_add(tgt, idx, src, axis=0):
    return tgt.clone().index_add_(axis, idx, src)
def _segment_sum(src, seg, n):
    out = torch.zeros((n,) + src.shape[1:], dtype=src.dtype)
    return out.index_add_(0, seg, src)
def _pad(x, pw):
    flat = tuple(v for pair in reversed(pw) for v in pair)
    return torch.nn.functional.pad(x, flat)

kernel_name = 'interleave_layers__ssm_conv_h3__dense_activation_silu__prompt'

def setup_inputs():

    _w = (lambda a: (lambda t: t.to(torch.bfloat16) if t.is_floating_point() else t)(torch.as_tensor(a)))
    def _A_setup():
        B, S, D = 1, 2048, 512
        ks = 4
        return {
            "q": _w((lambda *s: torch.randn(*s, dtype=torch.bfloat16) * 0.05)(B, S, D)),
            "k": _w((lambda *s: torch.randn(*s, dtype=torch.bfloat16) * 0.2)(B, S, D)),
            "v": _w((lambda *s: torch.randn(*s, dtype=torch.bfloat16) * 0.2)(B, S, D)),
            "shift_k": _w((lambda *s: torch.randn(*s, dtype=torch.bfloat16) * 0.2)(D, ks) * 0.5),
            "ssm_k": _w((lambda *s: torch.randn(*s, dtype=torch.bfloat16) * 0.4)(D, S) * (1.0 / S ** 0.5)),
            "ssm_D": _w((lambda *s: torch.randn(*s, dtype=torch.bfloat16) * 0.2)(D)),
        }
    _A_in = _A_setup()

    def _B_setup():
        B, S, D, F = 1, 2048, 512, 1792
        return {
            "x": _w((lambda *s: torch.randn(*s, dtype=torch.bfloat16) * 0.05)(B, S, D)),
            "w1": _w((lambda *s: torch.randn(*s, dtype=torch.bfloat16) * 0.8)(D, F) * (D ** -0.5)),
            "w2": _w((lambda *s: torch.randn(*s, dtype=torch.bfloat16) * 0.1)(F, D) * (F ** -0.5)),
        }
    _B_in = _B_setup()

    return {
        "A_q": _A_in["q"],
        "A_k": _A_in["k"],
        "A_v": _A_in["v"],
        "A_shift_k": _A_in["shift_k"],
        "A_ssm_k": _A_in["ssm_k"],
        "A_ssm_D": _A_in["ssm_D"],
        "B_x": _B_in["x"],
        "B_w1": _B_in["w1"],
        "B_w2": _B_in["w2"],
    }

def reference(A_q, A_k, A_v, A_shift_k, A_ssm_k, A_ssm_D, B_x, B_w1, B_w2):
    def _A_ref(q, k, v, shift_k, ssm_k, ssm_D):
        B, S, D = q.shape
        ks = shift_k.shape[-1]
        k_pad = _pad(k, ((0, 0), (ks - 1, 0), (0, 0)))
        k_shift = torch.zeros_like(k)
        for t in range(ks):
            k_shift = k_shift + k_pad[:, t:t + S, :] * shift_k[:, ks - 1 - t][None, None, :]
        kv = k_shift * v
        L = 2 * S
        kv_pad = _pad(kv, ((0, 0), (0, S), (0, 0)))
        kf_pad = _pad(ssm_k, ((0, 0), (0, S)))
        kv_f = (lambda x, axes=(-2,-1): torch.fft.rfft2(x.float(), dim=axes))(kv_pad[:, None, :, :], axes=(1, 2))
        kf_f = (lambda x, axes=(-2,-1): torch.fft.rfft2(x.float(), dim=axes))(kf_pad[:, None, :], axes=(1, 2))
        kf_f = (lambda x, *d: x.permute(*d))(kf_f, 1, 2, 0)
        y_f = kv_f * kf_f[None, :, :, :]
        y = (lambda x, s, axes=(-2,-1): torch.fft.irfft2(x, s=s, dim=axes).to(torch.bfloat16))(y_f, (1, L), axes=(1, 2))[:, 0, :S, :]
        y = y + kv * ssm_D[None, None, :]
        return q * y

    def _B_ref(x, w1, w2):
        h = torch.einsum("bsd,df->bsf", x, w1)
        h = _silu(h)
        out = torch.einsum("bsf,fd->bsd", h, w2)
        return out

    x = A_q
    x = x + _A_ref(_layernorm(x, axis=-1), A_k, A_v, A_shift_k, A_ssm_k, A_ssm_D)
    x = x + _B_ref(_layernorm(x, axis=-1), B_w1, B_w2)
    x = x + _A_ref(_layernorm(x, axis=-1), A_k, A_v, A_shift_k, A_ssm_k, A_ssm_D)
    x = x + _B_ref(_layernorm(x, axis=-1), B_w1, B_w2)
    return x
```

```python
import re

REG_RE = re.compile(r'\b([vas])(\d+)\b|\b([vas])\[(\d+):(\d+)\]')

def regs_of(op):
    op = op.strip()
    out = set()
    if op in ('vcc',): return {('s', 'vcc')}
    if op in ('exec',): return {('s', 'exec')}
    if op == 'm0': return {('s', 'm0')}
    for m in REG_RE.finditer(op):
        if m.group(1):
            out.add((m.group(1), int(m.group(2))))
        else:
            for i in range(int(m.group(4)), int(m.group(5)) + 1):
                out.add((m.group(3), i))
    return out

TRANS = ('v_exp_f32', 'v_log_f32', 'v_rcp_f32', 'v_rsq_f32', 'v_sqrt_f32', 'v_sin_f32', 'v_cos_f32')

class Ins:
    __slots__ = ('text', 'cond', 'tag', 'mn', 'ops', 'mods', 'kind', 'wr', 'rd', 'pseudo', 'mf')
    def __init__(self, text, cond=False, tag=None, pseudo=None):
        self.text = text; self.cond = cond; self.tag = tag; self.pseudo = pseudo
        self.kind = 'other'; self.wr = set(); self.rd = set(); self.mf = None
        self.mn = ''; self.ops = []; self.mods = ''
        if pseudo or text.endswith(':') or text.startswith('.') or text.startswith(';') or not text:
            self.kind = 'meta'
            return
        t = text.split(';')[0].strip()
        parts = t.split(None, 1)
        self.mn = mn = parts[0]
        rest = parts[1] if len(parts) > 1 else ''
        ops = []; depth = 0; cur = ''
        for ch in rest:
            if ch in '[(': depth += 1
            if ch in '])': depth -= 1
            if ch == ',' and depth == 0:
                ops.append(cur.strip()); cur = ''
            else:
                cur += ch
        if cur.strip(): ops.append(cur.strip())
        if ops:
            l = ops[-1].split(None, 1)
            ops[-1] = l[0]
            self.mods = l[1] if len(l) > 1 else ''
        self.ops = ops
        R = [regs_of(o) for o in ops]
        U = lambda xs: set().union(*xs) if xs else set()
        if mn.startswith('v_mfma'):
            self.kind = 'mfma'
            self.wr = R[0]; self.rd = U(R[1:])
            self.mf = dict(D=R[0], A=R[1], B=R[2], C=R[3], p=(8 if '32x32' in mn else 4))
        elif mn.startswith('v_'):
            self.kind = 'valu'
            if mn.startswith('v_cmp'):
                self.wr = R[0]; self.rd = U(R[1:])
            elif mn.startswith('v_permlane'):
                self.wr = U(R[:2]); self.rd = U(R[:2])
            elif mn.startswith(('v_fmac', 'v_dot2c', 'v_pk_fmac')):
                self.wr = R[0]; self.rd = U(R)
            elif mn.startswith(('v_add_co', 'v_sub_co', 'v_addc_co')):
                self.wr = U(R[:2]); self.rd = U(R[2:])
            elif mn.startswith('v_writelane'):
                self.wr = R[0]; self.rd = U(R)
            elif mn == 'v_nop':
                pass
            else:
                self.wr = R[0]; self.rd = U(R[1:])
                if '_dpp' in mn: self.rd |= R[0] if 'bound_ctrl' not in self.mods and False else set()
        elif mn.startswith(('buffer_load', 'global_load')):
            self.kind = 'vmem'
            if re.search(r'\blds\b', self.mods) or 'load_lds' in mn:
                self.rd = U(R) | {('s', 'm0')}
                self.kind = 'vmem'
            else:
                self.wr = R[0]; self.rd = U(R[1:])
        elif mn.startswith(('buffer_store', 'global_store')):
            self.kind = 'vmem'; self.rd = U(R)
        elif mn.startswith(('buffer_atomic', 'global_atomic')):
            self.kind = 'vmem'; self.rd = U(R)
            if 'sc0' in self.mods: self.wr = R[0]
        elif mn.startswith(('buffer_wbl2', 'buffer_inv')):
            self.kind = 'vmem'
        elif mn.startswith('ds_read') or mn.startswith(('ds_bpermute', 'ds_swizzle')):
            self.kind = 'ds'; self.wr = R[0]; self.rd = U(R[1:])
        elif mn.startswith('ds_'):
            self.kind = 'ds'; self.rd = U(R)
        elif mn.startswith(('s_load', 's_memtime', 's_memrealtime', 's_buffer_load')):
            self.kind = 'smem'; self.wr = R[0]; self.rd = U(R[1:])
        elif mn.startswith('s_'):
            self.kind = 'salu'
            if mn.startswith(('s_cmp', 's_cbranch', 's_branch', 's_waitcnt', 's_barrier', 's_nop', 's_endpgm', 's_sleep', 's_setprio', 's_bitcmp')):
                self.rd = U(R)
                if mn.startswith('s_cbranch_vcc'): self.rd |= {('s', 'vcc')}
            else:
                self.wr = R[0] if R else set(); self.rd = U(R[1:])
                if mn.startswith(('s_addk', 's_mulk', 's_cmov')): self.rd |= R[0]
                if 'saveexec' in mn: self.wr |= {('s', 'exec')}
        else:
            raise ValueError('unknown instr: ' + text)

    def states(self):
        if self.kind == 'meta': return 0
        if self.mn == 's_nop': return int(self.ops[0], 0) + 1
        return 1

class Asm:
    def __init__(self):
        self.ins = []
        self._cond = 0
        self.nlab = 0
    def __call__(self, text, tag=None):
        for line in text.split('\n'):
            line = line.strip()
            if line:
                self.ins.append(Ins(line, cond=bool(self._cond), tag=tag))
    def add(self, items):
        for it in items:
            if isinstance(it, Ins): self.ins.append(it)
            elif isinstance(it, tuple): self(it[0], tag=it[1])
            else: self(it)
    def lab(self, base):
        self.nlab += 1
        return f'L_{base}_{self.nlab}'
    def cond_begin(self): self._cond += 1
    def cond_end(self): self._cond -= 1
    def wait_vm(self, tag): self.ins.append(waitvm(tag))
    def wait_ds(self, tag): self.ins.append(waitds(tag))

def waitvm(tag): return Ins('', pseudo=('vm', tag))
def waitds(tag): return Ins('', pseudo=('ds', tag))

WC_RE = re.compile(r'(vmcnt|lgkmcnt)\((\d+)\)')

def insert_waits(ins):
    out = []
    vm = []
    lg = []
    def need(q, idx):
        return sum(1 for o in q[idx + 1:] if not o.cond)
    def apply(kind, n):
        q = vm if kind == 'vm' else lg
        keep = []
        for i, o in enumerate(q):
            if n == 0: continue
            if kind == 'lg' and o.kind == 'smem': keep.append(o); continue
            yo = sum(1 for y in q[i + 1:] if not y.cond and not (kind == 'lg' and y.kind == 'smem'))
            if yo >= n: continue
            keep.append(o)
        q[:] = keep
    for I in ins:
        if I.pseudo:
            k, tag = I.pseudo
            q = vm if k == 'vm' else lg
            idx = [i for i, o in enumerate(q) if o.tag == tag]
            if idx:
                if k == 'vm':
                    n = min(need(q, idx[-1]), 63)
                    out.append(Ins(f's_waitcnt vmcnt({n})', cond=I.cond)); apply('vm', n)
                else:
                    n = sum(1 for y in q[idx[-1] + 1:] if not y.cond and y.kind != 'smem')
                    n = min(n, 15)
                    out.append(Ins(f's_waitcnt lgkmcnt({n})', cond=I.cond)); apply('lg', n)
            continue
        if I.kind == 'meta':
            out.append(I); continue
        if I.mn == 's_waitcnt':
            if not I.cond:
                for k, n in WC_RE.findall(I.text):
                    apply('vm' if k == 'vmcnt' else 'lg', int(n))
            out.append(I); continue
        touched = I.rd | I.wr
        nv = None; nl = None
        for i in range(len(vm) - 1, -1, -1):
            if vm[i].wr & touched:
                nv = min(need(vm, i), 63); break
        for i in range(len(lg) - 1, -1, -1):
            if lg[i].wr & touched:
                if lg[i].kind == 'smem': nl = 0
                else:
                    n = sum(1 for y in lg[i + 1:] if not y.cond and y.kind != 'smem')
                    nl = min(n, 15) if nl is None else min(nl, n)
                if nl == 0: break
        if nv is not None or nl is not None:
            s = 's_waitcnt' + (f' vmcnt({nv})' if nv is not None else '') + (f' lgkmcnt({nl})' if nl is not None else '')
            out.append(Ins(s, cond=I.cond))
            if not I.cond:
                if nv is not None: apply('vm', nv)
                if nl is not None: apply('lg', nl)
            else:
                sv, sl = list(vm), list(lg)
                if nv is not None: apply('vm', nv)
                if nl is not None: apply('lg', nl)
                vm[:] = [o for o in sv if (o in vm) or not o.cond]
                lg[:] = [o for o in sl if (o in lg) or not o.cond]
        out.append(I)
        if I.kind == 'vmem': vm.append(I)
        elif I.kind in ('ds', 'smem'): lg.append(I)
    return out

def required_gap(P, C):
    g = 0
    vw = {r for r in P.wr if r[0] in 'va'}
    sw = {r for r in P.wr if r[0] == 's'}
    if P.kind == 'valu':
        if C.kind == 'mfma' and vw & C.rd: g = max(g, 2)
        if C.kind == 'valu':
            if P.mn.startswith(TRANS) and (vw & C.rd) and not C.mn.startswith(TRANS): g = max(g, 1)
            if P.mn.startswith(TRANS) and (vw & C.rd): g = max(g, 1)
            if ('_dpp' in C.mn or C.mn.startswith('v_permlane')) and (vw & C.rd): g = max(g, 2)
            if C.mn.startswith(('v_readlane', 'v_readfirstlane')) and (vw & C.rd): g = max(g, 1)
            if sw & C.rd: g = max(g, 4 if C.mn.startswith(('v_readlane', 'v_writelane')) else 2)
            if ('_sdwa' in P.mn or 'op_sel' in P.mods and not P.mn.startswith('v_pk_')) and (vw & (C.rd | C.wr)): g = max(g, 1)
        if C.kind == 'vmem' and (sw & C.rd): g = max(g, 5)
        if C.kind in ('salu', 'smem') and (sw & C.rd): g = max(g, 1)
    if P.kind == 'mfma':
        p = P.mf['p']; D = P.mf['D']
        full = 12 if p == 8 else 8
        if C.kind == 'mfma':
            if D & (C.mf['A'] | C.mf['B']): g = max(g, full)
            if D & C.mf['C']:
                if not (C.mf['C'] == D and C.mf['p'] == p): g = max(g, full - 2)
            elif D & C.mf['D'] and not (C.mf['D'] == D and C.mf['p'] == p): g = max(g, full - 2)
        elif C.kind in ('valu', 'vmem', 'ds'):
            if D & (C.rd | C.wr): g = max(g, full)
            if C.kind == 'valu' and (P.mf['C'] & C.wr): g = max(g, 7 if p == 8 else 3)
    if P.kind == 'salu' and ('s', 'm0') in P.wr and C.kind == 'vmem' and ('s', 'm0') in C.rd: g = max(g, 1)
    if P.kind == 'vmem' and 'store' in P.mn and ('x4' in P.mn or 'x3' in P.mn):
        data = regs_of(P.ops[0]) if P.mn.startswith('buffer') else regs_of(P.ops[1])
        if data & C.wr and C.kind in ('valu', 'mfma'): g = max(g, 2)
        elif data & C.wr: g = max(g, 1)
    return g

def insert_nops(ins):
    out = []
    npad = 0
    for I in ins:
        if I.kind != 'meta':
            dist = 0; need = 0
            for P in reversed(out):
                if dist >= 12: break
                if P.kind == 'meta': continue
                g = required_gap(P, I)
                if g > dist: need = max(need, g - dist)
                dist += P.states()
            if need:
                out.append(Ins(f's_nop {need - 1}', cond=I.cond)); npad += need
        out.append(I)
    return out, npad

def finalize(a):
    ins = insert_waits(a.ins)
    ins, npad = insert_nops(ins)
    lines = []
    for I in ins:
        lines.append(I.text if (I.text.endswith(':') or I.text.startswith('.')) else '    ' + I.text)
    return '\n'.join(lines) + '\n', dict(n=len([i for i in ins if i.kind != 'meta']), npad=npad)

def interleave(main, fill, start=0, end=None, weight=None):
    end = len(main) if end is None else end
    ng = end - start
    w = [(weight(f) if weight else 1) for f in fill]
    tot = sum(w)
    out = []; fi = 0; acc = 0.0
    for i, m in enumerate(main):
        out.extend(m if isinstance(m, list) else [m])
        if start <= i < end:
            target = tot * (i - start + 1) / ng
            while fi < len(fill) and acc + w[fi] / 2.0 <= target + 1e-9:
                f = fill[fi]
                out.extend(f if isinstance(f, list) else [f]); acc += w[fi]; fi += 1
    while fi < len(fill):
        f = fill[fi]; out.extend(f if isinstance(f, list) else [f]); fi += 1
    return out
```

```python
import sys, argparse
from asmlib import *

NAME = 'interleave_layers__ssm_conv_h3__dense_activation_silu__prompt'

def v(i, n=1): return f'v{i}' if n == 1 else f'v[{i}:{i+n-1}]'
def ac(i, n=1): return f'a{i}' if n == 1 else f'a[{i}:{i+n-1}]'
def s(i, n=1): return f's{i}' if n == 1 else f's[{i}:{i+n-1}]'

WS_FLAGS = 0x1000; FS = 128
WS_DIAG = 0x10000
WS_U = 0x200000
WS_Y = 0x400000
WS_AR = 0x800000; AR_STRIDE = 0x200000
AR_XH = [0x0, 0x20000]; AR_F = 0x40000; AR_X3 = 0x60000; AR_HF = [0x80000, 0x100000]
HF_TT = 114688
L_TB = 131072; L_P = 114688; L_U = 147456; U_PAR = 2368; U_CH = 4736; L_YL = 131072
SK, SV, SQ, SH, SW1, SW2, SWS, SO, SAR = 28, 32, 36, 40, 44, 48, 52, 56, 60
sX, sJ, sW, sMem, sGb, sNonce, sExp, sCnt = 64, 65, 66, 67, 68, 69, 70, 71
sT = 72
sC4K = 80; sRow = 81; sLN = 82; sD0 = 86; sD1 = 87
STAMPS = [88, 90, 92, 94, 96, 98, 100, 4, 6, 8, 10, 12, 14, 16, 18, 20, 22, 24]

class G:
    def __init__(self, opt):
        self.o = opt; self.a = Asm(); self.nst = 0; self.stnames = []
    def stamp(self, name):
        if self.o.diag:
            self.a(f's_memtime {s(STAMPS[self.nst], 2)}'); self.nst += 1; self.stnames.append(name)
    def srd(self, d, base, size):
        a = self.a
        a(f's_mov_b32 {s(d)}, {s(base)}'); a(f's_and_b32 {s(d+1)}, {s(base+1)}, 0xffff')
        a(f's_mov_b32 {s(d+2)}, {size}'); a(f's_mov_b32 {s(d+3)}, 0x20000')

    def signal(self, phase):
        a = self.a
        a('s_waitcnt vmcnt(0) lgkmcnt(0)'); a('s_barrier')
        a(f's_add_u32 {s(sExp)}, {s(sNonce)}, {phase}')
        L = a.lab('sig')
        a(f's_cmp_lg_u32 {s(sW)}, 0'); a(f's_cbranch_scc1 {L}')
        a.cond_begin()
        a(f'v_mov_b32 v2, {s(sExp)}')
        a('s_mov_b64 exec, 1')
        a(f'buffer_store_dword v2, {v(self.vMyFlag)}, {s(SWS,4)}, 0 offen sc1')
        a('s_mov_b64 exec, -1')
        a.cond_end()
        a(f'{L}:')
    def poll(self, vaddr):
        a = self.a
        L = a.lab('poll'); Ld = a.lab('polld')
        a(f's_mov_b32 {s(sCnt)}, 0x8000')
        a(f'{L}:')
        a(f'buffer_load_dword v2, {v(vaddr)}, {s(SWS,4)}, 0 offen sc1')
        a('s_waitcnt vmcnt(0)')
        a(f'v_subrev_u32 v2, {s(sExp)}, v2')
        a('v_cmp_gt_u32 vcc, 16, v2')
        a('s_cmp_eq_u64 vcc, exec')
        a(f's_cbranch_scc1 {Ld}')
        a(f's_sub_u32 {s(sCnt)}, {s(sCnt)}, 1')
        a(f's_cbranch_scc0 {L}')
        a(f'{Ld}:')

    def stop(self, k):
        if self.o.stop == k: self.a('s_branch L_fin')

    def ln_stats(self, X, T):
        a = self.a
        for r in range(2):
            x = X + 8 * r; t = T + 4 * r
            a(f'v_pk_add_f32 {v(t,2)}, {v(x,2)}, {v(x+2,2)}')
            a(f'v_pk_mul_f32 {v(t+2,2)}, {v(x,2)}, {v(x,2)}')
        for k in (1, 2, 3):
            for r in range(2):
                x = X + 8 * r; t = T + 4 * r
                if k > 1: a(f'v_pk_add_f32 {v(t,2)}, {v(t,2)}, {v(x+2*k,2)}')
                a(f'v_pk_fma_f32 {v(t+2,2)}, {v(x+2*k,2)}, {v(x+2*k,2)}, {v(t+2,2)}')
        for r in range(2):
            t = T + 4 * r
            a(f'v_add_f32 {v(t)}, {v(t)}, {v(t+1)}')
            a(f'v_add_f32 {v(t+2)}, {v(t+2)}, {v(t+3)}')
        a(f'v_permlane32_swap_b32 {v(T)}, {v(T+2)}')
        a(f'v_permlane32_swap_b32 {v(T+4)}, {v(T+6)}')
        a(f'v_add_f32 {v(T)}, {v(T)}, {v(T+2)}')
        a(f'v_add_f32 {v(T+4)}, {v(T+4)}, {v(T+6)}')
        a(f'v_permlane16_swap_b32 {v(T)}, {v(T+4)}')
        a(f'v_add_f32 {v(T)}, {v(T)}, {v(T+4)}')
        for ro in (8, 4, 2, 1):
            a(f'v_add_f32_dpp {v(T)}, {v(T)}, {v(T)} row_ror:{ro} row_mask:0xf bank_mask:0xf')
        a(f'v_mul_f32 {v(T)}, 0x3b000000, {v(T)}')
        a(f'v_mov_b32 {v(T+1)}, {v(T)}')
        a(f'v_permlane32_swap_b32 {v(T)}, {v(T+1)}')
        a(f'v_fma_f32 {v(T+1)}, -{v(T)}, {v(T)}, {v(T+1)}')
        a(f'v_max_f32 {v(T+1)}, 0, {v(T+1)}')
        a(f'v_add_f32 {v(T+1)}, 0x3727c5ac, {v(T+1)}')
        a(f'v_rsq_f32 {v(T+1)}, {v(T+1)}')
        a(f'v_mul_f32 {v(T)}, -{v(T)}, {v(T+1)}')
        a(f'v_readlane_b32 {s(sLN)}, {v(T+1)}, 0')
        a(f'v_readlane_b32 {s(sLN+2)}, {v(T+1)}, 16')
        a(f'v_readlane_b32 {s(sLN+1)}, {v(T)}, 0')
        a(f'v_readlane_b32 {s(sLN+3)}, {v(T)}, 16')
    def ln_apply(self, D, X):
        for r in range(2):
            for k in range(4):
                i = 8 * r + 2 * k
                self.a(f'v_pk_fma_f32 {v(D+i,2)}, {v(X+i,2)}, {s(sLN+2*r,2)}, {s(sLN+2*r,2)} op_sel:[0,0,1] op_sel_hi:[1,0,1]')
    def unpack(self, D, S, n):
        for i in range(n):
            self.a(f'v_lshlrev_b32 {v(D+2*i)}, 16, {v(S+i)}')
            self.a(f'v_and_b32 {v(D+2*i+1)}, 0xffff0000, {v(S+i)}')
    def pack(self, D, S, n):
        for i in range(n):
            self.a(f'v_cvt_pk_bf16_f32 {v(D+i)}, {v(S+2*i)}, {v(S+2*i+1)}')

    def gen(self):
        a = self.a; o = self.o
        vLane = 1; self.vMyFlag = 3; vF32 = 4; vF16 = 5; vF256 = 6; vRowA = 7
        a('s_cmp_ge_u32 s2, 0x100'); a('s_cbranch_scc1 L_end')
        if o.diag: a('s_memrealtime s[78:79]')
        self.stamp('start')
        a('s_load_dwordx16 s[4:19], s[0:1], 0'); a('s_load_dwordx8 s[20:27], s[0:1], 64')
        a(f'v_lshrrev_b32 v2, 6, v0'); a(f'v_and_b32 {v(vLane)}, 63, v0')
        a(f'v_readfirstlane_b32 {s(sW)}, v2')
        a(f's_and_b32 {s(sX)}, s2, 7'); a(f's_lshr_b32 {s(sJ)}, s2, 3')
        a(f's_and_b32 {s(sMem)}, {s(sJ)}, 15'); a(f's_lshr_b32 {s(sT)}, {s(sJ)}, 4')
        a(f's_lshl_b32 {s(sGb)}, {s(sX)}, 1'); a(f's_add_u32 {s(sGb)}, {s(sGb)}, {s(sT)}')
        a(f's_movk_i32 {s(sC4K)}, 0x1000')
        vTA = 8; vH0 = 9
        a('v_and_b32 v12, 31, v0'); a('v_lshrrev_b32 v13, 5, v0')
        a(f's_lshl_b32 {s(sT)}, {s(sJ)}, 16'); a(f's_lshl_b32 {s(sT+1)}, {s(sX)}, 7'); a(f's_add_u32 {s(sT)}, {s(sT)}, {s(sT+1)}')
        a(f'v_lshlrev_b32 {v(vTA)}, 13, v13'); a(f'v_lshl_add_u32 {v(vTA)}, v12, 2, {v(vTA)}'); a(f'v_add_u32 {v(vTA)}, {s(sT)}, {v(vTA)}')
        for e in range(3): a(f'v_subrev_u32 {v(vH0+e)}, {(3-e)*1024}, {v(vTA)}')
        a(f's_lshl_b32 {s(sT+1)}, {s(sX)}, 9'); a(f'v_lshl_add_u32 v14, v12, 4, {s(sT+1)}')
        a('s_waitcnt lgkmcnt(0)')
        a(f's_load_dword {s(sNonce)}, s[26:27], 0')
        self.srd(SK, 6, 0x200000); self.srd(SV, 8, 0x200000)
        KR, VR, WR = 24, 35, 44
        for e in range(3): a(f'buffer_load_dword {v(KR+e)}, {v(vH0+e)}, {s(SK,4)}, 0 offen')
        for e in range(8): a(f'buffer_load_dword {v(KR+3+e)}, {v(vTA)}, {s(SK,4)}, {s(sC4K) if e>=4 else 0} offen offset:{(e&3)*1024}')
        a(f'global_load_dwordx4 {v(WR,4)}, v14, s[10:11]')
        for e in range(8): a(f'buffer_load_dword {v(VR+e)}, {v(vTA)}, {s(SV,4)}, {s(sC4K) if e>=4 else 0} offen offset:{(e&3)*1024}')
        a(f's_lshl_b32 {s(sT)}, {s(sX)}, 5'); a(f's_add_u32 {s(sT)}, {s(sT)}, {s(sJ)}')
        sCp = sT + 5
        a(f's_mov_b32 {s(sCp)}, {s(sT)}')
        a(f's_lshl_b32 {s(sT)}, {s(sT)}, 2'); a(f's_load_dword {s(sD1)}, s[14:15], {s(sT)}')
        a(f's_lshr_b32 {s(sT)}, {s(sW)}, 1'); a(f's_lshl_b32 {s(sT+1)}, {s(sCp)}, 1'); a(f's_add_u32 {s(sT)}, {s(sT)}, {s(sT+1)}')
        a(f's_lshl_b32 {s(sT)}, {s(sT)}, 12')
        a(f's_add_u32 {s(SH)}, s12, {s(sT)}'); a(f's_addc_u32 {s(SH+1)}, s13, 0'); a(f's_and_b32 {s(SH+1)}, {s(SH+1)}, 0xffff')
        a(f's_mov_b32 {s(SH+2)}, 0x1000'); a(f's_mov_b32 {s(SH+3)}, 0x20000')
        vHB = 15; vSh = 16; vB = 17; vGq = 18
        a(f'v_and_b32 {v(vB)}, 15, {v(vLane)}'); a(f'v_lshrrev_b32 {v(vGq)}, 4, {v(vLane)}')
        a(f's_and_b32 {s(sT)}, {s(sW)}, 1'); a(f's_lshl_b32 {s(sT)}, {s(sT)}, 7'); a(f's_add_u32 {s(sT)}, {s(sT)}, 1')
        a(f'v_lshl_add_u32 {v(vHB)}, {v(vGq)}, 5, {v(vB)}'); a(f'v_add_u32 {v(vHB)}, {s(sT)}, {v(vHB)}')
        a(f'v_and_b32 {v(vSh)}, 1, {v(vHB)}'); a(f'v_lshlrev_b32 {v(vSh)}, 4, {v(vSh)}')
        a(f'v_and_b32 {v(vHB)}, -2, {v(vHB)}'); a(f'v_lshlrev_b32 {v(vHB)}, 1, {v(vHB)}')
        AF = 128; XF = 120
        for k in range(8):
            a(f'v_subrev_u32 v19, {32-4*k}, {v(vHB)}')
            a(f'buffer_load_dword {v(AF+k)}, v19, {s(SH,4)}, 0 offen')
        for i in range(8):
            for r in range(4):
                if i == 0 and r < 2: continue
                a(f'buffer_load_dwordx4 {v(AF+16*i+4*r,4)}, {v(vHB)}, {s(SH,4)}, 0 offen offset:{512*i+16*r-32}')
            a(f'buffer_load_dword {v(XF+i)}, {v(vHB)}, {s(SH,4)}, 0 offen offset:{512*i+32}')
        self.srd(SQ, 4, 0x200000); self.srd(SW1, 18, 0x1c0000); self.srd(SW2, 20, 0x1c0000)
        self.srd(SWS, 26, 0x10000000); self.srd(SO, 22, 0x200000)
        a(f's_cmp_ge_u32 {s(sMem)}, 14'); a(f's_cselect_b32 {s(SW1+2)}, 0, {s(SW1+2)}')
        a(f's_lshl_b32 {s(sT)}, {s(sGb)}, 21'); a(f's_add_u32 {s(sT)}, {s(sT)}, {WS_AR}')
        a(f's_add_u32 {s(SAR)}, s26, {s(sT)}'); a(f's_addc_u32 {s(SAR+1)}, s27, 0'); a(f's_and_b32 {s(SAR+1)}, {s(SAR+1)}, 0xffff')
        a(f's_mov_b32 {s(SAR+2)}, {AR_STRIDE}'); a(f's_mov_b32 {s(SAR+3)}, 0x20000')
        a(f's_and_b32 {s(sT)}, {s(sMem)}, 3'); a(f's_lshl_b32 {s(sRow)}, {s(sT)}, 5')
        a(f's_lshr_b32 {s(sT)}, {s(sW)}, 1'); a(f's_lshl_b32 {s(sT)}, {s(sT)}, 4'); a(f's_add_u32 {s(sRow)}, {s(sRow)}, {s(sT)}')
        a(f's_and_b32 {s(sT)}, {s(sMem)}, 12'); a(f's_add_u32 {s(sRow)}, {s(sRow)}, {s(sT)}')
        a(f's_and_b32 {s(sT)}, {s(sW)}, 1'); a(f's_lshl_b32 {s(sT)}, {s(sT)}, 1'); a(f's_add_u32 {s(sRow)}, {s(sRow)}, {s(sT)}')
        a(f's_lshl_b32 {s(sT)}, {s(sRow)}, 10'); a(f'v_lshl_add_u32 {v(vRowA)}, {v(vLane)}, 4, {s(sT)}')
        QR = 112
        a(f's_lshl_b32 {s(sT)}, {s(sGb)}, 17')
        for r in range(2): a(f'buffer_load_dwordx4 {v(QR+4*r,4)}, {v(vRowA)}, {s(SQ,4)}, {s(sT)} offen offset:{1024*r}')
        a(f'v_lshlrev_b32 v19, 2, {v(vGq)}'); a(f'v_xor_b32 v19, v19, {v(vB)}'); a('v_lshlrev_b32 v19, 4, v19')
        a(f's_movk_i32 {s(sT)}, 3584'); a(f'v_mad_u32_u24 v19, {v(vGq)}, {s(sT)}, v19')
        a(f's_mul_i32 {s(sT)}, {s(sW)}, {128*3584}'); a(f's_lshl_b32 {s(sT+1)}, {s(sMem)}, 8'); a(f's_add_u32 {s(sT)}, {s(sT)}, {s(sT+1)}')
        a(f's_lshl_b32 m0, {s(sW)}, 15')
        for n in range(32):
            a(f'buffer_load_dwordx4 v19, {s(SW1,4)}, {s(sT)} offen lds', tag='w1')
            if n < 31:
                a(f's_add_u32 m0, m0, 1024'); a(f's_add_u32 {s(sT)}, {s(sT)}, 14336')
        a(f's_lshl_b32 {s(sT)}, {s(sCp)}, 7'); a(f's_add_u32 {s(sT)}, {s(sT)}, {WS_FLAGS}'); a(f'v_mov_b32 {v(self.vMyFlag)}, {s(sT)}')
        a(f's_lshl_b32 {s(sT)}, {s(sX)}, 12'); a(f's_add_u32 {s(sT)}, {s(sT)}, {WS_FLAGS}'); a(f'v_lshl_add_u32 {v(vF32)}, v12, 7, {s(sT)}')
        a(f's_lshl_b32 {s(sT)}, {s(sGb)}, 11'); a(f's_add_u32 {s(sT)}, {s(sT)}, {WS_FLAGS}'); a(f'v_lshl_add_u32 {v(vF16)}, {v(vB)}, 7, {s(sT)}')
        a(f's_movk_i32 {s(sT)}, {WS_FLAGS}'); a(f'v_lshl_add_u32 {v(vF256)}, v0, 7, {s(sT)}')
        a(f's_mul_i32 {s(sT)}, {s(sW)}, {U_PAR}'); a(f's_add_u32 {s(sT)}, {s(sT)}, {L_U}')
        a(f'v_lshl_add_u32 v19, {v(vLane)}, 2, {s(sT)}'); a('v_mov_b32 v20, 0')
        a('s_mov_b64 exec, 0x0fffffffffffffff' if False else 's_lshr_b64 exec, -1, 4')
        a('ds_write_b32 v19, v20'); a('s_mov_b64 exec, -1')
        a(f's_mul_i32 {s(sNonce)}, {s(sNonce)}, 0x9e3779b1'); a(f's_add_u32 {s(sNonce)}, {s(sNonce)}, 0x7f4a7c15')
        a(f's_lshl_b32 {s(sD0)}, {s(sD1)}, 16'); a(f's_and_b32 {s(sD1)}, {s(sD1)}, 0xffff0000')
        self.stamp('issued')
        WP, KP, VP, SS = 48, 56, 78, 94
        self.unpack(KP, KR, 11)
        for j in range(4):
            for c in range(2):
                src = WR + 2 * c + (j >> 1)
                a(f'v_lshlrev_b32 {v(WP+2*j+c)}, 16, {v(src)}' if j % 2 == 0 else f'v_and_b32 {v(WP+2*j+c)}, 0xffff0000, {v(src)}')
        for t in range(8): a(f'v_pk_mul_f32 {v(SS+2*t,2)}, {v(WP,2)}, {v(KP+2*(t+3),2)}')
        for j in (1, 2, 3):
            for t in range(8): a(f'v_pk_fma_f32 {v(SS+2*t,2)}, {v(WP+2*j,2)}, {v(KP+2*(t+3-j),2)}, {v(SS+2*t,2)}')
        self.unpack(VP, VR, 8)
        for t in range(8): a(f'v_pk_mul_f32 {v(SS+2*t,2)}, {v(SS+2*t,2)}, {v(VP+2*t,2)}')
        for c in range(2):
            for jj in range(4): a(f'v_cvt_pk_bf16_f32 {v(24+4*c+jj)}, {v(SS+2*(7-2*jj)+c)}, {v(SS+2*(6-2*jj)+c)}')
        a('v_and_b32 v19, 7, v12'); a('v_xor_b32 v19, v19, v13'); a('v_lshlrev_b32 v19, 4, v19'); a('v_lshl_add_u32 v19, v12, 8, v19')
        a(f'v_add_u32 v19, {L_TB}, v19')
        a('ds_write_b128 v19, v[24:27]'); a('ds_write_b128 v19, v[28:31] offset:128')
        a('v_lshrrev_b32 v20, 3, v0'); a('v_and_b32 v21, 7, v0')
        a('v_bfe_u32 v22, v0, 4, 3'); a('v_xor_b32 v22, v22, v21'); a('v_lshlrev_b32 v22, 4, v22'); a('v_lshl_add_u32 v22, v20, 7, v22')
        a(f'v_add_u32 v22, {L_TB}, v22')
        a(f's_lshl_b32 {s(sT)}, {s(sX)}, 18'); a(f's_lshl_b32 {s(sT+1)}, {s(sJ)}, 7'); a(f's_add_u32 {s(sT)}, {s(sT)}, {s(sT+1)}'); a(f's_add_u32 {s(sT)}, {s(sT)}, {WS_U}')
        a(f's_add_u32 {s(sT+1)}, {s(sT)}, {32*4096}')
        a('v_lshlrev_b32 v20, 12, v20'); a('v_lshl_add_u32 v20, v21, 4, v20')
        a('s_waitcnt lgkmcnt(0)'); a('s_barrier')
        a('ds_read_b128 v[32:35], v22'); a('ds_read_b128 v[36:39], v22 offset:4096')
        a(f'buffer_store_dwordx4 v[32:35], v20, {s(SWS,4)}, {s(sT)} offen sc1')
        a(f'buffer_store_dwordx4 v[36:39], v20, {s(SWS,4)}, {s(sT+1)} offen sc1')
        self.stamp('T')
        for i in range(8):
            for k in range(16):
                hi = AF + 16 * i + k + 1 if k < 15 else XF + i
                a(f'v_alignbit_b32 {v(AF+16*i+k)}, {v(hi)}, {v(AF+16*i+k)}, {v(vSh)}')
        self.signal(1)
        self.stop(1)
        vTr = 19
        a(f'v_bfe_u32 v20, {v(vLane)}, 2, 2')
        a(f'v_lshrrev_b32 v21, 5, {v(vLane)}'); a('v_lshl_add_u32 v21, v21, 3, v20')
        a(f'v_xor_b32 v22, {s(sW)}, v20'); a('v_lshlrev_b32 v22, 6, v22'); a(f'v_lshl_add_u32 {v(vTr)}, v21, 8, v22')
        a(f'v_bfe_u32 v22, {v(vLane)}, 4, 1'); a(f'v_lshl_add_u32 {v(vTr)}, v22, 5, {v(vTr)}')
        a(f'v_and_b32 v22, 1, {v(vLane)}'); a(f'v_lshl_add_u32 {v(vTr)}, v22, 4, {v(vTr)}')
        a(f'v_bfe_u32 v22, {v(vLane)}, 1, 1'); a(f'v_lshl_add_u32 {v(vTr)}, v22, 3, {v(vTr)}')
        a(f'v_add_u32 v23, 0x10000, {v(vTr)}')
        for ks in range(32):
            for u in range(2):
                a(f'ds_read_b64_tr_b16 {ac(4*ks+2*u,2)}, {v(vTr if ks<16 else 23)} offset:{(ks&15)*4096+u*1024}')
        vW2 = 8; vT2 = 9
        a(f'v_lshrrev_b32 v22, 3, {v(vLane)}'); a(f'v_bfe_u32 v23, {v(vLane)}, 4, 1'); a('v_lshlrev_b32 v23, 2, v23')
        a(f'v_and_b32 {v(vW2)}, 7, {v(vLane)}'); a(f'v_xor_b32 {v(vW2)}, {v(vW2)}, v23'); a(f'v_lshlrev_b32 {v(vW2)}, 4, {v(vW2)}')
        a(f'v_lshl_add_u32 {v(vW2)}, v22, 10, {v(vW2)}')
        a(f's_mul_i32 {s(sT)}, {s(sW)}, {448*1024}'); a(f's_and_b32 {s(sT+1)}, {s(sMem)}, 7'); a(f's_lshl_b32 {s(sT+1)}, {s(sT+1)}, 7')
        a(f's_add_u32 {s(sT)}, {s(sT)}, {s(sT+1)}'); a(f'v_add_u32 {v(vW2)}, {s(sT)}, {v(vW2)}')
        a(f's_mul_i32 {s(sT)}, {s(sW)}, 28672')
        a(f'v_lshl_add_u32 {v(vT2)}, v21, 7, {s(sT)}')
        a(f'v_bfe_u32 v22, {v(vLane)}, 4, 1'); a(f'v_lshl_add_u32 {v(vT2)}, v22, 5, {v(vT2)}')
        a(f'v_and_b32 v22, 3, {v(vLane)}'); a(f'v_lshl_add_u32 {v(vT2)}, v22, 3, {v(vT2)}')
        a(f'v_lshrrev_b32 v22, 1, v20'); a(f'v_lshl_add_u32 {v(vT2)}, v22, 6, {v(vT2)}')
        a(f'v_xor_b32 {v(vT2+1)}, 64, {v(vT2)}')
        def w2_dma(part):
            a(f's_mul_i32 m0, {s(sW)}, 28672'); a(f's_mov_b32 {s(sT)}, {part*28*8192}')
            for n in range(28):
                a(f'buffer_load_dwordx4 {v(vW2)}, {s(SW2,4)}, {s(sT)} offen lds', tag='w2')
                if n < 27:
                    a('s_add_u32 m0, m0, 1024'); a(f's_add_u32 {s(sT)}, {s(sT)}, 8192')
        def w2reg(ks, dt, off=0, n=4):
            i = (ks % 14) * 8 + dt * 4 + off
            return ac(128 + i, n) if ks < 14 else v(144 + i, n)
        def w2_tr(part):
            for k in range(14):
                for dt in range(2):
                    for u in range(2):
                        a(f'ds_read_b64_tr_b16 {w2reg(14*part+k,dt,2*u,2)}, {v(vT2+dt)} offset:{k*2048+u*512}')
        self.poll(vF32)
        self.stamp('S1')
        a(f's_lshl_b32 {s(sT)}, {s(sCp)}, 13'); a(f's_add_u32 {s(sT)}, {s(sT)}, {WS_U}'); a(f's_add_u32 {s(sT+1)}, {s(sT)}, 4096')
        a('v_lshlrev_b32 v20, 4, v0')
        a(f'buffer_load_dwordx4 v[88:91], v20, {s(SWS,4)}, {s(sT)} offen sc1')
        a(f'buffer_load_dwordx4 v[92:95], v20, {s(SWS,4)}, {s(sT+1)} offen sc1')
        a('v_and_b32 v21, 1, v0'); a(f'v_mul_u32_u24 v21, {U_PAR}, v21'); a('v_lshrrev_b32 v22, 1, v0'); a('v_lshl_add_u32 v21, v22, 4, v21')
        a(f'v_add_u32 v21, {L_U+240}, v21')
        vBB = 11
        a(f's_lshr_b32 {s(sT)}, {s(sW)}, 1'); a(f's_mul_i32 {s(sT)}, {s(sT)}, {U_CH}'); a(f's_and_b32 {s(sT+1)}, {s(sW)}, 1'); a(f's_lshl_b32 {s(sT+1)}, {s(sT+1)}, 7')
        a(f's_sub_u32 {s(sT)}, {s(sT)}, {s(sT+1)}'); a(f's_add_u32 {s(sT)}, {s(sT)}, {L_U+14*16}')
        a(f'v_lshlrev_b32 v22, 1, {v(vGq)}'); a(f'v_sub_u32 v22, {v(vB)}, v22'); a(f'v_lshl_add_u32 {v(vBB)}, v22, 4, {s(sT)}')
        vUD = 12
        a(f's_lshl_b32 {s(sT)}, {s(sW)}, 9'); a(f's_add_u32 {s(sT)}, {s(sT)}, {L_U+240+8}')
        a(f'v_lshl_add_u32 {v(vUD)}, {v(vB)}, 4, {s(sT)}')
        a(f'v_lshrrev_b32 v22, 1, {v(vGq)}'); a(f'v_mul_u32_u24 v22, {U_PAR}, v22'); a(f'v_add_u32 {v(vUD)}, {v(vUD)}, v22')
        a(f'v_and_b32 v22, 1, {v(vGq)}'); a('v_lshlrev_b32 v22, 3, v22'); a(f'v_sub_u32 {v(vUD)}, {v(vUD)}, v22')
        a('ds_write_b128 v21, v[88:91]'); a(f'ds_write_b128 v21, v[92:95] offset:{U_CH}')
        a('s_waitcnt lgkmcnt(0)'); a('s_barrier')
        self.stamp('Uld')
        ACC, BR = 24, 56
        def bread(m, r):
            par = (31 - r) & 1; add = ((31 - r) >> 1) - 14
            return f'ds_read_b128 {v(BR+4*m,4)}, {v(vBB)} offset:{par*U_PAR+(16*m+add)*16}'
        for m in range(8): a(bread(m, 0))
        w2_dma(0)
        UD = 96
        for n2 in range(2):
            for c in range(2): a(f'ds_read_b64 {v(UD+4*n2+2*c,2)}, {v(vUD)} offset:{c*U_CH+n2*256}')
        for r in range(4):
            for m in range(8):
                for i in range(8 - m):
                    C = v(ACC + 4 * (i + m), 4)
                    a(f'v_mfma_f32_16x16x32_bf16 {C}, {v(AF+16*i+4*r,4)}, {v(BR+4*m,4)}, {"0" if (r==0 and m==0) else C}')
                if r < 3: a(bread(m, r + 1))
        self.stamp('convmf')
        a(f's_lshl_b32 {s(sT)}, {s(sW)}, 13'); a(f's_add_u32 {s(sT)}, {s(sT)}, {L_P}'); a(f'v_lshl_add_u32 v20, {v(vLane)}, 4, {s(sT)}')
        a(f's_lshl_b32 {s(sT)}, {s(sW)}, 11'); a(f's_add_u32 {s(sT)}, {s(sT)}, {L_P}'); a(f'v_lshl_add_u32 v21, {v(vLane)}, 4, {s(sT)}')
        for N in range(8): a(f'ds_write_b128 v20, {v(ACC+4*N,4)} offset:{N*1024}')
        UF = 128
        for n2 in range(2):
            for c in range(2):
                b = UF + 8 * n2 + 4 * c; sr = UD + 4 * n2 + 2 * c
                a(f'v_and_b32 {v(b+0)}, 0xffff0000, {v(sr+1)}'); a(f'v_lshlrev_b32 {v(b+1)}, 16, {v(sr+1)}')
                a(f'v_and_b32 {v(b+2)}, 0xffff0000, {v(sr)}'); a(f'v_lshlrev_b32 {v(b+3)}, 16, {v(sr)}')
        a(f's_lshl_b32 {s(sT)}, {s(sCp)}, 13'); a(f's_lshl_b32 {s(sT+1)}, {s(sW)}, 11'); a(f's_add_u32 {s(sT)}, {s(sT)}, {s(sT+1)}'); a(f's_add_u32 {s(sT)}, {s(sT)}, {WS_Y}')
        a(f'v_lshlrev_b32 v22, 4, {v(vLane)}')
        a('s_waitcnt lgkmcnt(0)'); a('s_barrier')
        for n2 in range(2):
            for w in range(4): a(f'ds_read_b128 {v(BR+16*n2+4*w,4)}, v21 offset:{w*8192+n2*1024}')
        for n2 in range(2):
            for c in range(2):
                p = BR + 16 * n2 + 8 * c; b = UF + 8 * n2 + 4 * c
                for r in range(4): a(f'v_fma_f32 {v(b+r)}, {v(b+r)}, {s(sD0+c)}, {v(p+r)}')
                for r in range(4): a(f'v_add_f32 {v(b+r)}, {v(b+r)}, {v(p+4+r)}')
            for r in range(4): a(f'v_cvt_pk_bf16_f32 {v(88+4*n2+r)}, {v(UF+8*n2+r)}, {v(UF+8*n2+4+r)}')
            a(f'buffer_store_dwordx4 {v(88+4*n2,4)}, v22, {s(SWS,4)}, {s(sT)} offen offset:{n2*1024} sc1')
        self.stamp('conv')
        RX, RN, RY, RT = 24, 40, 56, 72
        self.unpack(RX, QR, 8)
        self.ln_stats(RX, RT)
        self.ln_apply(RN, RX)
        self.signal(2)
        self.stop(2)
        w2_tr(0)
        a('s_waitcnt lgkmcnt(0)')
        w2_dma(1)
        self.poll(vF256)
        a('s_barrier')
        self.stamp('S2')
        L = a.lab('ep')
        a('s_cmp_lg_u32 s2, 0'); a(f's_cbranch_scc1 {L}')
        a.cond_begin()
        a(f'v_mov_b32 v20, {s(sNonce)}'); a('v_mov_b32 v21, 0'); a('s_mov_b64 exec, 1')
        a(f'buffer_store_dword v20, v21, {s(SWS,4)}, 0 offen sc1'); a('s_mov_b64 exec, -1')
        a.cond_end()
        a(f'{L}:')
        a(f's_lshl_b32 {s(sT)}, {s(sX)}, 10'); a(f's_and_b32 {s(sT+1)}, {s(sMem)}, 12'); a(f's_lshl_b32 {s(sT+1)}, {s(sT+1)}, 6'); a(f's_add_u32 {s(sT)}, {s(sT)}, {s(sT+1)}')
        a(f's_and_b32 {s(sT+1)}, {s(sGb)}, 1'); a(f's_lshl_b32 {s(sT+1)}, {s(sT+1)}, 7'); a(f's_add_u32 {s(sT)}, {s(sT)}, {s(sT+1)}')
        a(f's_and_b32 {s(sT+1)}, {s(sMem)}, 3'); a(f's_lshl_b32 {s(sT+1)}, {s(sT+1)}, 5'); a(f's_add_u32 {s(sT)}, {s(sT)}, {s(sT+1)}')
        a(f's_add_u32 {s(sT)}, {s(sT)}, {WS_Y}'); a(f's_add_u32 {s(sT+1)}, {s(sT)}, {128*8192}')
        a('v_lshrrev_b32 v20, 1, v0'); a('v_and_b32 v21, 1, v0')
        a('v_lshlrev_b32 v22, 13, v20'); a('v_lshl_add_u32 v22, v21, 4, v22')
        a(f'buffer_load_dwordx4 v[88:91], v22, {s(SWS,4)}, {s(sT)} offen sc1')
        a(f'buffer_load_dwordx4 v[92:95], v22, {s(SWS,4)}, {s(sT+1)} offen sc1')
        w2_tr(1)
        a('v_lshlrev_b32 v21, 12, v21'); a('v_lshl_add_u32 v21, v20, 2, v21'); a(f'v_add_u32 v21, {L_YL}, v21')
        a(f's_lshl_b32 {s(sT)}, {s(sW)}, 11'); a(f's_add_u32 {s(sT)}, {s(sT)}, {L_YL}'); a(f'v_lshl_add_u32 v20, {v(vLane)}, 4, {s(sT)}')
        for e in range(2):
            for k in range(4): a(f'ds_write_b32 v21, {v(88+4*e+k)} offset:{k*1024+e*512}')
        a('s_waitcnt lgkmcnt(0)'); a('s_barrier')
        a('ds_read_b128 v[88:91], v20'); a('ds_read_b128 v[92:95], v20 offset:1024')
        self.stamp('Yld')
        vXD = 8; XA = 96; vHS = 9; vHL = 10; vRW = 11; vRR = 12; vFO = 13
        def ffn_addrs():
            a(f's_lshl_b32 {s(sT)}, {s(sW)}, 2'); a(f'v_add_u32 v20, {s(sT)}, {v(vGq)}')
            a(f'v_xor_b32 v21, v20, {v(vB)}'); a('v_lshlrev_b32 v21, 4, v21'); a(f'v_lshl_add_u32 {v(vXD)}, v20, 10, v21')
            a(f'v_and_b32 v20, 31, {v(vLane)}'); a(f'v_lshrrev_b32 v21, 5, {v(vLane)}')
            a(f'v_xor_b32 v22, v21, {v(vB)}'); a('v_lshlrev_b32 v22, 4, v22'); a(f'v_lshl_add_u32 {v(XA)}, v20, 8, v22')
            for e in range(1, 8): a(f'v_xor_b32 {v(XA+e)}, {32*e}, {v(XA)}')
            a(f's_lshl_b32 {s(sT)}, {s(sMem)}, 13'); a(f's_lshl_b32 {s(sT+1)}, {s(sW)}, 11'); a(f's_add_u32 {s(sT)}, {s(sT)}, {s(sT+1)}')
            a(f'v_lshl_add_u32 {v(vHS)}, {v(vLane)}, 4, {s(sT)}')
            a(f's_lshr_b32 {s(sT)}, {s(sMem)}, 3'); a(f's_mul_i32 {s(sT)}, {s(sT)}, {2*HF_TT}'); a(f's_mul_i32 {s(sT+1)}, {s(sW)}, 28672'); a(f's_add_u32 {s(sT)}, {s(sT)}, {s(sT+1)}')
            a(f'v_lshl_add_u32 {v(vHL)}, {v(vLane)}, 4, {s(sT)}')
            a(f'v_and_b32 v22, 7, {v(vLane)}'); a('v_xor_b32 v22, v22, v21'); a('v_lshlrev_b32 v22, 4, v22'); a('v_lshl_add_u32 v22, v20, 8, v22')
            a(f's_lshl_b32 {s(sT)}, {s(sW)}, 13'); a(f'v_add_u32 {v(vRW)}, {s(sT)}, v22')
            a('v_lshrrev_b32 v20, 3, v0'); a('v_and_b32 v21, 7, v0'); a('v_and_b32 v22, 7, v20'); a('v_lshlrev_b32 v23, 1, v21'); a('v_xor_b32 v22, v22, v23')
            a('v_lshlrev_b32 v22, 4, v22'); a(f'v_lshl_add_u32 {v(vRR)}, v20, 8, v22')
            a(f's_lshr_b32 {s(sT)}, {s(sMem)}, 3'); a(f's_lshl_b32 {s(sT)}, {s(sT)}, 16'); a(f's_and_b32 {s(sT+1)}, {s(sMem)}, 7'); a(f's_lshl_b32 {s(sT+1)}, {s(sT+1)}, 7')
            a(f's_add_u32 {s(sT)}, {s(sT)}, {s(sT+1)}'); a('v_lshlrev_b32 v20, 10, v20'); a('v_lshl_add_u32 v20, v21, 4, v20'); a(f'v_add_u32 {v(vFO)}, {s(sT)}, v20')

        def r_tail(layer):
            for i in range(8): a(f'v_pk_fma_f32 {v(RX+2*i,2)}, {v(RN+2*i,2)}, {v(RY+2*i,2)}, {v(RX+2*i,2)}')
            self.ln_stats(RX, RT)
            self.ln_apply(RN, RX)
            self.pack(80, RN, 8)
            a(f's_mov_b32 {s(sT)}, {AR_XH[layer]}')
            for r in range(2): a(f'buffer_store_dwordx4 {v(80+4*r,4)}, {v(vRowA)}, {s(SAR,4)}, {s(sT)} offen offset:{1024*r} sc1')
            self.pack(104, RX, 8)
            if layer == 0:
                for i in range(8): a(f'v_accvgpr_write_b32 {ac(240+i)}, {v(104+i)}')
            else:
                a(f's_mov_b32 {s(sT)}, {AR_X3}')
                for r in range(2): a(f'buffer_store_dwordx4 {v(104+4*r,4)}, {v(vRowA)}, {s(SAR,4)}, {s(sT)} offen offset:{1024*r} sc1')

        def g1(layer):
            Lskip = a.lab('g1skip')
            a(f's_cmp_ge_u32 {s(sMem)}, 14'); a(f's_cbranch_scc1 {Lskip}')
            order = [0, 2, 1, 3]
            a(f's_lshl_b32 {s(sT+2)}, {s(sW)}, 10')
            for sl, tt in enumerate(order):
                for b in range(2): a(f's_mov_b32 {s(sT+b)}, {AR_XH[layer]+tt*32768+b*16384}')
                for kq in range(4):
                    for b in range(2):
                        a(f's_add_u32 m0, {s(sT+2)}, {sl*32768+kq*8192+b*4096-kq*256}')
                        a(f'buffer_load_dwordx4 {v(vXD)}, {s(SAR,4)}, {s(sT+b)} offen offset:{kq*256} sc1 lds', tag=f'x{sl}_{kq}')
            XB = 56; NB = 6; ET = 80; PK = 88
            def rd(i):
                sl, ks = divmod(i, 32)
                pre = []
                if ks % 8 == 0:
                    key = {(0, 0): 'x0_0', (0, 1): 'x0_1', (0, 2): 'x0_3', (1, 0): 'x1_3', (2, 0): 'x3_3'}.get((sl, ks // 8))
                    if key: pre = [waitvm(key), 's_barrier']
                if sl == 2 and ks < 8: pre.append(f'v_xor_b32 {v(XA+ks)}, 0x10000, {v(XA+ks)}')
                return pre + [f'ds_read_b128 {v(XB+4*(i%NB),4)}, {v(XA+(ks&7))} offset:{(sl&1)*32768+(ks>>3)*8192}']
            def epi(sl):
                A0 = 24 + 16 * (sl & 1); L = []
                for q in range(4):
                    t = ET + 4 * (q & 1)
                    for e in range(4): L.append(f'v_mul_f32 {v(t+e)}, 0xbfb8aa3b, {v(A0+4*q+e)}')
                    for e in range(4): L.append(f'v_exp_f32 {v(t+e)}, {v(t+e)}')
                    for e in range(4): L.append(f'v_add_f32 {v(t+e)}, 1.0, {v(t+e)}')
                    for e in range(4): L.append(f'v_rcp_f32 {v(t+e)}, {v(t+e)}')
                    for e in range(4): L.append(f'v_mul_f32 {v(t+e)}, {v(t+e)}, {v(A0+4*q+e)}')
                    for e in range(2): L.append(f'v_cvt_pk_bf16_f32 {v(PK+2*q+e)}, {v(t+2*e)}, {v(t+2*e+1)}')
                    if q & 1:
                        st = []
                        if q == 1: st.append(f's_mov_b32 {s(sT)}, {AR_HF[layer]+order[sl]*HF_TT}')
                        st.append(f'buffer_store_dwordx4 {v(PK+4*(q>>1),4)}, {v(vHS)}, {s(SAR,4)}, {s(sT)} offen offset:{(q>>1)*1024} sc1')
                        L.append(st)
                return L
            wt = lambda f: 2 if isinstance(f, str) and f.startswith(TRANS) else 1
            for i in range(NB - 1): a.add(rd(i))
            for sl in range(4):
                main = []
                for ks in range(32):
                    i = 32 * sl + ks; C = v(24 + 16 * (sl & 1), 16)
                    it = []
                    if i + NB - 1 < 128: it += rd(i + NB - 1)
                    it.append(f'v_mfma_f32_32x32x16_bf16 {C}, {ac(4*ks,4)}, {v(XB+4*(i%NB),4)}, {"0" if ks==0 else C}')
                    main.append(it)
                a.add(interleave(main, epi(sl - 1), start=2, end=31, weight=wt) if sl else [x for it in main for x in it])
            self.stamp(f'g1mf{layer}')
            for e in range(8): a(f'v_xor_b32 {v(XA+e)}, 0x10000, {v(XA+e)}')
            for f in epi(3): a.add(f if isinstance(f, list) else [f])
            a(f'{Lskip}:')

        def g2(layer):
            HB = 56; NB = 8; AC2 = [24, 104]; RD = [24, 56]
            def ld(i):
                hf, ks = divmod(i, 28)
                pre = [f's_mov_b32 {s(sT+3)}, {AR_HF[layer]+hf*HF_TT+(ks>>2)*4096}'] if ks % 4 == 0 else []
                return pre + [f'buffer_load_dwordx4 {v(HB+4*(i%NB),4)}, {v(vHL)}, {s(SAR,4)}, {s(sT+3)} offen offset:{(ks&3)*1024} sc1']
            def red(hf):
                L = []
                for dt in range(2):
                    for q in range(4):
                        c = (8 * dt + 2 * q) * 16
                        if c: L.append([f'v_xor_b32 v20, {c}, {v(vRW)}', (f'ds_write_b128 v20, {v(AC2[hf]+16*dt+4*q,4)} offset:{hf*32768}', 'rw')])
                        else: L.append([(f'ds_write_b128 {v(vRW)}, {v(AC2[hf]+16*dt+4*q,4)} offset:{hf*32768}', 'rw')])
                L.append(f'v_xor_b32 v21, 16, {v(vRR)}')
                L.append([waitds('rw'), 's_barrier'])
                R0 = RD[hf]
                for w in range(4):
                    for e in range(2):
                        L.append(f'ds_read_b128 {v(R0+8*w+4*e,4)}, {v(vRR) if e==0 else "v21"} offset:{hf*32768+w*8192}')
                if layer == 1:
                    for i in range(4):
                        L.append(f'v_lshlrev_b32 {v(136+2*i)}, 16, {v(88+4*hf+i)}'); L.append(f'v_and_b32 {v(136+2*i+1)}, 0xffff0000, {v(88+4*hf+i)}')
                for w in (1, 2, 3):
                    for e in range(8): L.append(f'v_add_f32 {v(R0+e)}, {v(R0+e)}, {v(R0+8*w+e)}')
                if layer == 1:
                    for e in range(8): L.append(f'v_add_f32 {v(R0+e)}, {v(R0+e)}, {v(136+e)}')
                for i in range(4): L.append(f'v_cvt_pk_bf16_f32 {v(R0+8+i)}, {v(R0+2*i)}, {v(R0+2*i+1)}')
                if layer == 0:
                    L.append([f's_mov_b32 {s(sT)}, {AR_F+hf*32768}', f'buffer_store_dwordx4 {v(R0+8,4)}, {v(vFO)}, {s(SAR,4)}, {s(sT)} offen sc1'])
                else:
                    L.append([f's_lshl_b32 {s(sT)}, {s(sGb)}, 17', f's_add_u32 {s(sT)}, {s(sT)}, {hf*32768}',
                              f'buffer_store_dwordx4 {v(R0+8,4)}, {v(vFO)}, {s(SO,4)}, {s(sT)} offen sc1'])
                return L
            for i in range(NB): a.add(ld(i))
            if layer == 1:
                for hf in range(2):
                    a(f's_mov_b32 {s(sT)}, {AR_X3+hf*32768}')
                    a(f'buffer_load_dwordx4 {v(88+4*hf,4)}, {v(vFO)}, {s(SAR,4)}, {s(sT)} offen sc1')
            for hf in range(2):
                main = []
                for ks in range(28):
                    i = 28 * hf + ks
                    for dt in range(2):
                        C = v(AC2[hf] + 16 * dt, 16)
                        it = [f'v_mfma_f32_32x32x16_bf16 {C}, {w2reg(ks,dt)}, {v(HB+4*(i%NB),4)}, {"0" if ks==0 else C}']
                        if dt == 1 and i + NB < 56: it += ld(i + NB)
                        main.append(it)
                a.add(interleave(main, red(0), start=6, end=50) if hf else [x for it in main for x in it])
            self.stamp(f'g2mf{layer}')
            for f in red(1): a.add(f if isinstance(f, list) else [f])

        for i in range(8): a(f'v_accvgpr_write_b32 {ac(248+i)}, {v(88+i)}')
        self.unpack(RY, 88, 8)
        r_tail(0)
        ffn_addrs()
        self.signal(3); self.stop(3); self.poll(vF16)
        self.stamp('S3')
        g1(0)
        self.signal(4); self.stop(4); self.poll(vF16)
        self.stamp('S4')
        g2(0)
        self.signal(5); self.stop(5)
        for i in range(8): a(f'v_accvgpr_read_b32 {v(80+i)}, {ac(240+i)}')
        for i in range(8): a(f'v_accvgpr_read_b32 {v(88+i)}, {ac(248+i)}')
        self.unpack(RX, 80, 8); self.unpack(RY, 88, 8)
        self.poll(vF16)
        self.stamp('S5')
        a(f's_mov_b32 {s(sT)}, {AR_F}')
        for r in range(2): a(f'buffer_load_dwordx4 {v(80+4*r,4)}, {v(vRowA)}, {s(SAR,4)}, {s(sT)} offen offset:{1024*r} sc1')
        self.unpack(RN, 80, 8)
        for i in range(8): a(f'v_pk_add_f32 {v(RX+2*i,2)}, {v(RX+2*i,2)}, {v(RN+2*i,2)}')
        self.ln_stats(RX, RT); self.ln_apply(RN, RX)
        r_tail(1)
        self.signal(6); self.stop(6); self.poll(vF16)
        self.stamp('S6')
        d = o.diag; o.diag = False
        g1(1)
        o.diag = d
        self.signal(7); self.stop(7); self.poll(vF16)
        self.stamp('S7')
        o.diag = False
        g2(1)
        o.diag = d
        a('L_fin:')
        if o.diag:
            a('s_waitcnt vmcnt(0)')
            self.stamp('end')
            a('s_memrealtime s[76:77]')
            a('s_waitcnt lgkmcnt(0)')
            a('v_mov_b32 v20, 0')
            for i in range(self.nst): a(f'v_writelane_b32 v20, {s(STAMPS[i])}, {i}')
            a('v_writelane_b32 v20, s78, 30'); a('v_writelane_b32 v20, s76, 31')
            a(f's_lshl_b32 {s(sT)}, s2, 2'); a(f's_add_u32 {s(sT)}, {s(sT)}, {s(sW)}'); a(f's_lshl_b32 {s(sT)}, {s(sT)}, 7'); a(f's_add_u32 {s(sT)}, {s(sT)}, {WS_DIAG}')
            a(f'v_lshlrev_b32 v21, 2, {v(vLane)}'); a('s_lshr_b64 exec, -1, 32')
            a(f'buffer_store_dword v20, v21, {s(SWS,4)}, {s(sT)} offen')
        a('L_end:')
        a('s_endpgm')
        body, st = finalize(a)
        hdr = open('cdna_kernels/' + NAME + '.s.ref').read().split('; Override launch')[0]
        txt = hdr + '; @launch grid=(256,1,1) block=(256,1,1) lds=163840\n'
        if o.diag: txt += '; stamps: ' + ' '.join(self.stnames) + '\n'
        txt += f'''.amdgcn_target "amdgcn-amd-amdhsa--gfx950"
.text
.globl {NAME}_kernel
.p2align 8
.type {NAME}_kernel,@function
{NAME}_kernel:
{body}.section .rodata,"a"
.p2align 6
.amdhsa_kernel {NAME}_kernel
  .amdhsa_next_free_vgpr 512
  .amdhsa_next_free_sgpr 102
  .amdhsa_accum_offset 256
  .amdhsa_group_segment_fixed_size 0
  .amdhsa_kernarg_size 96
  .amdhsa_user_sgpr_count 2
  .amdhsa_user_sgpr_kernarg_segment_ptr 1
  .amdhsa_system_sgpr_workgroup_id_x 1
  .amdhsa_float_denorm_mode_32 3
.end_amdhsa_kernel
'''
        return txt, st

if __name__ == '__main__':
    ap = argparse.ArgumentParser()
    ap.add_argument('-o', default='cdna_kernels/' + NAME + '.s')
    ap.add_argument('--diag', action='store_true'); ap.add_argument('--stop', type=int, default=0)
    o = ap.parse_args()
    txt, st = G(o).gen()
    open(o.o, 'w').write(txt)
    print(st)
```

```python
import re

REG_RE = re.compile(r'\b([vas])(\d+)\b|\b([vas])\[(\d+):(\d+)\]')

def regs_of(op):
    op = op.strip()
    out = set()
    if op in ('vcc',): return {('s', 'vcc')}
    if op in ('exec',): return {('s', 'exec')}
    if op == 'm0': return {('s', 'm0')}
    for m in REG_RE.finditer(op):
        if m.group(1):
            out.add((m.group(1), int(m.group(2))))
        else:
            for i in range(int(m.group(4)), int(m.group(5)) + 1):
                out.add((m.group(3), i))
    return out

TRANS = ('v_exp_f32', 'v_log_f32', 'v_rcp_f32', 'v_rsq_f32', 'v_sqrt_f32', 'v_sin_f32', 'v_cos_f32')

class Ins:
    __slots__ = ('text', 'cond', 'tag', 'mn', 'ops', 'mods', 'kind', 'wr', 'rd', 'pseudo', 'mf')
    def __init__(self, text, cond=False, tag=None, pseudo=None):
        self.text = text; self.cond = cond; self.tag = tag; self.pseudo = pseudo
        self.kind = 'other'; self.wr = set(); self.rd = set(); self.mf = None
        self.mn = ''; self.ops = []; self.mods = ''
        if pseudo or text.endswith(':') or text.startswith('.') or text.startswith(';') or not text:
            self.kind = 'meta'
            return
        t = text.split(';')[0].strip()
        parts = t.split(None, 1)
        self.mn = mn = parts[0]
        rest = parts[1] if len(parts) > 1 else ''
        ops = []; depth = 0; cur = ''
        for ch in rest:
            if ch in '[(': depth += 1
            if ch in '])': depth -= 1
            if ch == ',' and depth == 0:
                ops.append(cur.strip()); cur = ''
            else:
                cur += ch
        if cur.strip(): ops.append(cur.strip())
        if ops:
            l = ops[-1].split(None, 1)
            ops[-1] = l[0]
            self.mods = l[1] if len(l) > 1 else ''
        self.ops = ops
        R = [regs_of(o) for o in ops]
        U = lambda xs: set().union(*xs) if xs else set()
        if mn.startswith('v_mfma'):
            self.kind = 'mfma'
            self.wr = R[0]; self.rd = U(R[1:])
            self.mf = dict(D=R[0], A=R[1], B=R[2], C=R[3], p=(8 if '32x32' in mn else 4))
        elif mn.startswith('v_'):
            self.kind = 'valu'
            if mn.startswith('v_cmp'):
                self.wr = R[0]; self.rd = U(R[1:])
            elif mn.startswith('v_permlane'):
                self.wr = U(R[:2]); self.rd = U(R[:2])
            elif mn.startswith(('v_fmac', 'v_dot2c', 'v_pk_fmac')):
                self.wr = R[0]; self.rd = U(R)
            elif mn.startswith(('v_add_co', 'v_sub_co', 'v_addc_co')):
                self.wr = U(R[:2]); self.rd = U(R[2:])
            elif mn.startswith('v_writelane'):
                self.wr = R[0]; self.rd = U(R)
            elif mn == 'v_nop':
                pass
            else:
                self.wr = R[0]; self.rd = U(R[1:])
                if '_dpp' in mn: self.rd |= R[0] if 'bound_ctrl' not in self.mods and False else set()
        elif mn.startswith(('buffer_load', 'global_load')):
            self.kind = 'vmem'
            if re.search(r'\blds\b', self.mods) or 'load_lds' in mn:
                self.rd = U(R) | {('s', 'm0')}
                self.kind = 'vmem'
            else:
                self.wr = R[0]; self.rd = U(R[1:])
        elif mn.startswith(('buffer_store', 'global_store')):
            self.kind = 'vmem'; self.rd = U(R)
        elif mn.startswith(('buffer_atomic', 'global_atomic')):
            self.kind = 'vmem'; self.rd = U(R)
            if 'sc0' in self.mods: self.wr = R[0]
        elif mn.startswith(('buffer_wbl2', 'buffer_inv')):
            self.kind = 'vmem'
        elif mn.startswith('ds_read') or mn.startswith(('ds_bpermute', 'ds_swizzle')):
            self.kind = 'ds'; self.wr = R[0]; self.rd = U(R[1:])
        elif mn.startswith('ds_'):
            self.kind = 'ds'; self.rd = U(R)
        elif mn.startswith(('s_load', 's_memtime', 's_memrealtime', 's_buffer_load')):
            self.kind = 'smem'; self.wr = R[0]; self.rd = U(R[1:])
        elif mn.startswith('s_'):
            self.kind = 'salu'
            if mn.startswith(('s_cmp', 's_cbranch', 's_branch', 's_waitcnt', 's_barrier', 's_nop', 's_endpgm', 's_sleep', 's_setprio', 's_bitcmp')):
                self.rd = U(R)
                if mn.startswith('s_cbranch_vcc'): self.rd |= {('s', 'vcc')}
            else:
                self.wr = R[0] if R else set(); self.rd = U(R[1:])
                if mn.startswith(('s_addk', 's_mulk', 's_cmov')): self.rd |= R[0]
                if 'saveexec' in mn: self.wr |= {('s', 'exec')}
        else:
            raise ValueError('unknown instr: ' + text)

    def states(self):
        if self.kind == 'meta': return 0
        if self.mn == 's_nop': return int(self.ops[0], 0) + 1
        return 1

class Asm:
    def __init__(self):
        self.ins = []
        self._cond = 0
        self.nlab = 0
    def __call__(self, text, tag=None):
        for line in text.split('\n'):
            line = line.strip()
            if line:
                self.ins.append(Ins(line, cond=bool(self._cond), tag=tag))
    def add(self, items):
        for it in items:
            if isinstance(it, Ins): self.ins.append(it)
            elif isinstance(it, tuple): self(it[0], tag=it[1])
            else: self(it)
    def lab(self, base):
        self.nlab += 1
        return f'L_{base}_{self.nlab}'
    def cond_begin(self): self._cond += 1
    def cond_end(self): self._cond -= 1
    def wait_vm(self, tag): self.ins.append(waitvm(tag))
    def wait_ds(self, tag): self.ins.append(waitds(tag))

def forget(prefix): return Ins('', pseudo=('forget', prefix))
def waitvm(tag): return Ins('', pseudo=('vm', tag))
def waitds(tag): return Ins('', pseudo=('ds', tag))

WC_RE = re.compile(r'(vmcnt|lgkmcnt)\((\d+)\)')

def insert_waits(ins):
    out = []
    vm = []
    lg = []
    def need(q, idx):
        return sum(1 for o in q[idx + 1:] if not o.cond)
    def apply(kind, n):
        q = vm if kind == 'vm' else lg
        keep = []
        for i, o in enumerate(q):
            if n == 0: continue
            if kind == 'lg' and o.kind == 'smem': keep.append(o); continue
            yo = sum(1 for y in q[i + 1:] if not y.cond and not (kind == 'lg' and y.kind == 'smem'))
            if yo >= n: continue
            keep.append(o)
        q[:] = keep
    seen = set()
    for I in ins:
        if I.tag: seen.add(I.tag)
        if I.pseudo:
            k, tag = I.pseudo
            if k == 'forget':
                seen.difference_update({x for x in seen if x.startswith(tag)}); continue
            assert tag in seen, f'wait on tag {tag} that was not issued yet'
            q = vm if k == 'vm' else lg
            idx = [i for i, o in enumerate(q) if o.tag == tag]
            if idx:
                if k == 'vm':
                    n = min(need(q, idx[-1]), 63)
                    out.append(Ins(f's_waitcnt vmcnt({n})', cond=I.cond)); apply('vm', n)
                else:
                    n = sum(1 for y in q[idx[-1] + 1:] if not y.cond and y.kind != 'smem')
                    n = min(n, 15)
                    out.append(Ins(f's_waitcnt lgkmcnt({n})', cond=I.cond)); apply('lg', n)
            continue
        if I.kind == 'meta':
            out.append(I); continue
        if I.mn == 's_waitcnt':
            if not I.cond:
                for k, n in WC_RE.findall(I.text):
                    apply('vm' if k == 'vmcnt' else 'lg', int(n))
            out.append(I); continue
        touched = I.rd | I.wr
        nv = None; nl = None
        for i in range(len(vm) - 1, -1, -1):
            if vm[i].wr & touched:
                nv = min(need(vm, i), 63); break
        for i in range(len(lg) - 1, -1, -1):
            if lg[i].wr & touched:
                if lg[i].kind == 'smem': nl = 0
                else:
                    n = sum(1 for y in lg[i + 1:] if not y.cond and y.kind != 'smem')
                    nl = min(n, 15) if nl is None else min(nl, n)
                if nl == 0: break
        if nv is not None or nl is not None:
            s = 's_waitcnt' + (f' vmcnt({nv})' if nv is not None else '') + (f' lgkmcnt({nl})' if nl is not None else '')
            out.append(Ins(s, cond=I.cond))
            if not I.cond:
                if nv is not None: apply('vm', nv)
                if nl is not None: apply('lg', nl)
            else:
                sv, sl = list(vm), list(lg)
                if nv is not None: apply('vm', nv)
                if nl is not None: apply('lg', nl)
                vm[:] = [o for o in sv if (o in vm) or not o.cond]
                lg[:] = [o for o in sl if (o in lg) or not o.cond]
        out.append(I)
        if I.kind == 'vmem': vm.append(I)
        elif I.kind in ('ds', 'smem'): lg.append(I)
    return out

def required_gap(P, C):
    g = 0
    vw = {r for r in P.wr if r[0] in 'va'}
    sw = {r for r in P.wr if r[0] == 's'}
    if P.kind == 'valu':
        if C.kind == 'mfma' and vw & C.rd: g = max(g, 2)
        if C.kind == 'valu':
            if P.mn.startswith(TRANS) and (vw & C.rd) and not C.mn.startswith(TRANS): g = max(g, 1)
            if P.mn.startswith(TRANS) and (vw & C.rd): g = max(g, 1)
            if ('_dpp' in C.mn or C.mn.startswith('v_permlane')) and (vw & C.rd): g = max(g, 2)
            if C.mn.startswith(('v_readlane', 'v_readfirstlane')) and (vw & C.rd): g = max(g, 1)
            if sw & C.rd: g = max(g, 4 if C.mn.startswith(('v_readlane', 'v_writelane')) else 2)
            if ('_sdwa' in P.mn or 'op_sel' in P.mods and not P.mn.startswith('v_pk_')) and (vw & (C.rd | C.wr)): g = max(g, 1)
        if C.kind == 'vmem' and (sw & C.rd): g = max(g, 5)
        if C.kind in ('salu', 'smem') and (sw & C.rd): g = max(g, 1)
    if P.kind == 'mfma':
        p = P.mf['p']; D = P.mf['D']
        full = 12 if p == 8 else 8
        if C.kind == 'mfma':
            if D & (C.mf['A'] | C.mf['B']): g = max(g, full)
            if D & C.mf['C']:
                if not (C.mf['C'] == D and C.mf['p'] == p): g = max(g, full - 2)
            elif D & C.mf['D'] and not (C.mf['D'] == D and C.mf['p'] == p): g = max(g, full - 2)
        elif C.kind in ('valu', 'vmem', 'ds'):
            if D & (C.rd | C.wr): g = max(g, full)
            if C.kind == 'valu' and (P.mf['C'] & C.wr): g = max(g, 7 if p == 8 else 3)
    if P.kind == 'salu' and ('s', 'm0') in P.wr and C.kind == 'vmem' and ('s', 'm0') in C.rd: g = max(g, 1)
    if P.kind == 'vmem' and 'store' in P.mn and ('x4' in P.mn or 'x3' in P.mn):
        data = regs_of(P.ops[0]) if P.mn.startswith('buffer') else regs_of(P.ops[1])
        if data & C.wr and C.kind in ('valu', 'mfma'): g = max(g, 2)
        elif data & C.wr: g = max(g, 1)
    return g

def insert_nops(ins):
    out = []
    npad = 0
    for I in ins:
        if I.kind != 'meta':
            dist = 0; need = 0
            for P in reversed(out):
                if dist >= 12: break
                if P.kind == 'meta': continue
                g = required_gap(P, I)
                if g > dist: need = max(need, g - dist)
                dist += P.states()
            if need:
                out.append(Ins(f's_nop {need - 1}', cond=I.cond)); npad += need
        out.append(I)
    return out, npad

def finalize(a):
    ins = insert_waits(a.ins)
    ins, npad = insert_nops(ins)
    lines = []
    for I in ins:
        lines.append(I.text if (I.text.endswith(':') or I.text.startswith('.')) else '    ' + I.text)
    return '\n'.join(lines) + '\n', dict(n=len([i for i in ins if i.kind != 'meta']), npad=npad)

def interleave(main, fill, start=0, end=None, weight=None):
    end = len(main) if end is None else end
    ng = end - start
    w = [(weight(f) if weight else 1) for f in fill]
    tot = sum(w)
    out = []; fi = 0; acc = 0.0
    for i, m in enumerate(main):
        out.extend(m if isinstance(m, list) else [m])
        if start <= i < end:
            target = tot * (i - start + 1) / ng
            while fi < len(fill) and acc + w[fi] / 2.0 <= target + 1e-9:
                f = fill[fi]
                out.extend(f if isinstance(f, list) else [f]); acc += w[fi]; fi += 1
    while fi < len(fill):
        f = fill[fi]; out.extend(f if isinstance(f, list) else [f]); fi += 1
    return out
```

```python
import sys, argparse
from asmlib import *

NAME = 'interleave_layers__ssm_conv_h3__dense_activation_silu__prompt'

def v(i, n=1): return f'v{i}' if n == 1 else f'v[{i}:{i+n-1}]'
def ac(i, n=1): return f'a{i}' if n == 1 else f'a[{i}:{i+n-1}]'
def s(i, n=1): return f's{i}' if n == 1 else f's[{i}:{i+n-1}]'
def flat(L):
    out = []
    for x in L:
        if isinstance(x, list): out.extend(flat(x))
        else: out.append(x)
    return out

WS_XF = 0x1000
WS_PF = 0x2000
WS_DIAG = 0x10000
WS_Y = 0x200000
WS_AR = 0x400000; AR_STRIDE = 0x200000
AR_A = 0x0; AR_HF = 0x40000; AR_FL = 0x120000
HF_TT = 114688
L_AUX = 131072
L_TB = L_AUX; L_U = L_AUX + 8192; U_PAR = 2368; U_CH = 4736; L_H = L_U + 9472; H_CH = 4160
L_P = L_AUX; L_YL = L_AUX
SK, SV, SQ, SH, SW1, SW2, SWS, SO, SAR = 28, 32, 36, 40, 44, 48, 52, 56, 60
sKO = 28
sX, sJ, sW, sMem, sGb, sNonce, sExp, sCnt = 64, 65, 66, 67, 68, 69, 70, 71
sT = 72
sCp = 76; sWo = 77; sWb = 3
sC4K = 80; sRow = 81; sLN = 82; sD0 = 86; sD1 = 87
STAMPS = [88, 90, 92, 94, 96, 98, 100, 4, 6, 8, 10, 12, 14, 16, 18, 20, 22, 24]
vLane, vMyF, vPollF, vRowA = 1, 3, 4, 7
vB, vGq = 17, 18
RST = 144
W2B = 160

class G:
    def __init__(self, opt):
        self.o = opt; self.a = Asm(); self.stn = {}; self.local = False
        self.want = set(opt.stamps.split(',')) if opt.stamps else None
    def stamp(self, name):
        if self.o.diag and (self.want is None or name in self.want or name in ('start', 'end')):
            if name not in self.stn:
                if len(self.stn) >= len(STAMPS) - 1 and name != 'end': return []
                self.stn[name] = len(self.stn)
            return [f's_memtime {s(STAMPS[self.stn[name]], 2)}']
        return []
    def st(self, name): self.a.add(self.stamp(name))
    def srd(self, d, base, size):
        a = self.a
        a(f's_mov_b32 {s(d)}, {s(base)}'); a(f's_and_b32 {s(d+1)}, {s(base+1)}, 0xffff')
        a(f's_mov_b32 {s(d+2)}, {size}'); a(f's_mov_b32 {s(d+3)}, 0x20000')
    @property
    def SC(self): return '' if self.local else ' sc1'

    def spin(self, load, check):
        a = self.a
        L = a.lab('poll'); Ld = a.lab('polld')
        a(f's_mov_b32 {s(sCnt)}, 0x8000')
        a(f'{L}:')
        a.add(load); a.add(check)
        a(f's_cbranch_scc1 {Ld}')
        a(f's_sub_u32 {s(sCnt)}, {s(sCnt)}, 1')
        a(f's_cbranch_scc0 {L}')
        a(f'{Ld}:')
    def flagcheck(self, r=2):
        return ['s_waitcnt vmcnt(0)', f'v_subrev_u32 {v(r)}, {s(sExp)}, {v(r)}', f'v_cmp_gt_u32 vcc, 16, {v(r)}', 's_cmp_eq_u64 vcc, exec']
    def gsignal(self, phase):
        a = self.a
        a(f's_add_u32 {s(sExp)}, {s(sNonce)}, {phase}'); a(f'v_mov_b32 v2, {s(sExp)}')
        a('s_waitcnt vmcnt(0) lgkmcnt(0)')
        a(f'buffer_store_dword v2, {v(vMyF)}, {s(SAR,4)}, 0 offen{self.SC}')
    def gpoll(self):
        self.spin([f'buffer_load_dword v2, {v(vPollF)}, {s(SAR,4)}, 0 offen sc1'], self.flagcheck())
    def stop(self, k):
        if self.o.stop == k: self.a('s_branch L_fin')

    def wstream_reset(self): self.wi = 0
    def D(self, n):
        out = []
        for _ in range(n):
            i = self.wi
            if i >= 88: break
            self.wi += 1
            g = []
            if i < 32:
                if i == 0: g += [f's_lshl_b32 {s(sWo)}, {s(sX)}, 15']
                else:
                    g += [f's_add_u32 {s(sWo)}, {s(sWo)}, 8192']
                    if i % 4 == 0: g += [f's_and_b32 {s(sWo)}, {s(sWo)}, 0x3ffff']
                g = [f's_add_u32 m0, {s(sWb)}, {i*1024}'] + g
                g += [(f'buffer_load_dwordx4 {v(self.vW2)}, {s(SW2,4)}, {s(sWo)} offen lds', f'w{i}')]
            elif i < 64:
                r = i - 32
                if r == 0: g += [f's_mul_i32 {s(sWo)}, {s(sX)}, {4*14336}']
                else:
                    g += [f's_add_u32 {s(sWo)}, {s(sWo)}, 14336']
                    if r % 4 == 0: g += [f's_cmp_eq_u32 {s(sWo)}, {32*14336}', f's_cselect_b32 {s(sWo)}, 0, {s(sWo)}']
                g = [f's_add_u32 m0, {s(sWb)}, {r*1024}'] + g
                if r % 2 == 0: g = [waitds(f't{r//2}')] + g
                g += [(f'buffer_load_dwordx4 {v(self.vW1)}, {s(SW1,4)}, {s(sWo)} offen lds', f'w{i}')]
            else:
                r = i - 64
                base = [L_AUX, 0, 32768][r // 8] + (r % 8) * 1024
                if r == 0: g += [f's_lshl_b32 {s(sWb)}, {s(sW)}, 13', f's_lshl_b32 {s(sWo)}, {s(sKO+8)}, 4']
                else:
                    g += [f's_add_u32 {s(sWo)}, {s(sWo)}, 8192']
                    if r % 4 == 0: g += [f's_cmp_eq_u32 {s(sWo)}, {56*8192}', f's_cselect_b32 {s(sWo)}, {32*8192}, {s(sWo)}']
                g += [f's_add_u32 m0, {s(sWb)}, {base}', 's_nop 0']
                g += [(f'buffer_load_dwordx4 {v(self.vW2)}, {s(SW2,4)}, {s(sWo)} offen lds', f'w{i}')]
            out.append(g)
        return out
    def w2reg(self, ks, dt, off=0, n=4):
        return ac(128 + ks * 8 + dt * 4 + off, n) if ks < 16 else v(W2B + (ks - 16) * 8 + dt * 4 + off, n)
    def w2a_tr(self, k):
        g = [waitvm(f'w{2*k+1}')]
        for dt in range(2):
            for u in range(2):
                g.append((f'ds_read_b64_tr_b16 {self.w2reg(k,dt,2*u,2)}, {v(self.vT2+dt)} offset:{k*2048+u*512}', f't{k}'))
        return g

    def ln_stats(self, X, T):
        a = self.a
        for r in range(2):
            x = X + 8 * r; t = T + 4 * r
            a(f'v_pk_add_f32 {v(t,2)}, {v(x,2)}, {v(x+2,2)}')
            a(f'v_pk_mul_f32 {v(t+2,2)}, {v(x,2)}, {v(x,2)}')
        for k in (1, 2, 3):
            for r in range(2):
                x = X + 8 * r; t = T + 4 * r
                if k > 1: a(f'v_pk_add_f32 {v(t,2)}, {v(t,2)}, {v(x+2*k,2)}')
                a(f'v_pk_fma_f32 {v(t+2,2)}, {v(x+2*k,2)}, {v(x+2*k,2)}, {v(t+2,2)}')
        for r in range(2):
            t = T + 4 * r
            a(f'v_add_f32 {v(t)}, {v(t)}, {v(t+1)}')
            a(f'v_add_f32 {v(t+2)}, {v(t+2)}, {v(t+3)}')
        a(f'v_permlane32_swap_b32 {v(T)}, {v(T+2)}')
        a(f'v_permlane32_swap_b32 {v(T+4)}, {v(T+6)}')
        a(f'v_add_f32 {v(T)}, {v(T)}, {v(T+2)}')
        a(f'v_add_f32 {v(T+4)}, {v(T+4)}, {v(T+6)}')
        a(f'v_permlane16_swap_b32 {v(T)}, {v(T+4)}')
        a(f'v_add_f32 {v(T)}, {v(T)}, {v(T+4)}')
        for ro in (8, 4, 2, 1):
            a(f'v_add_f32_dpp {v(T)}, {v(T)}, {v(T)} row_ror:{ro} row_mask:0xf bank_mask:0xf')
        a(f'v_mul_f32 {v(T)}, 0x3b000000, {v(T)}')
        a(f'v_mov_b32 {v(T+1)}, {v(T)}')
        a(f'v_permlane32_swap_b32 {v(T)}, {v(T+1)}')
        a(f'v_fma_f32 {v(T+1)}, -{v(T)}, {v(T)}, {v(T+1)}')
        a(f'v_max_f32 {v(T+1)}, 0, {v(T+1)}')
        a(f'v_add_f32 {v(T+1)}, 0x3727c5ac, {v(T+1)}')
        a(f'v_rsq_f32 {v(T+1)}, {v(T+1)}')
        a(f'v_mul_f32 {v(T)}, -{v(T)}, {v(T+1)}')
        a(f'v_readlane_b32 {s(sLN)}, {v(T+1)}, 0')
        a(f'v_readlane_b32 {s(sLN+2)}, {v(T+1)}, 16')
        a(f'v_readlane_b32 {s(sLN+1)}, {v(T)}, 0')
        a(f'v_readlane_b32 {s(sLN+3)}, {v(T)}, 16')
    def ln_apply(self, D, X):
        for r in range(2):
            for k in range(4):
                i = 8 * r + 2 * k
                self.a(f'v_pk_fma_f32 {v(D+i,2)}, {v(X+i,2)}, {s(sLN+2*r,2)}, {s(sLN+2*r,2)} op_sel:[0,0,1] op_sel_hi:[1,0,1]')
    def unpack_l(self, D, S, n):
        L = []
        for i in range(n):
            L += [f'v_lshlrev_b32 {v(D+2*i)}, 16, {v(S+i)}', f'v_and_b32 {v(D+2*i+1)}, 0xffff0000, {v(S+i)}']
        return L
    def unpack(self, D, S, n): self.a.add(self.unpack_l(D, S, n))
    def pack(self, D, S, n):
        for i in range(n):
            self.a(f'v_cvt_pk_bf16_f32 {v(D+i)}, {v(S+2*i)}, {v(S+2*i+1)}')

    def prologue(self):
        a = self.a; o = self.o
        a('s_cmp_ge_u32 s2, 0x100'); a('s_cbranch_scc1 L_end')
        if o.diag: a('s_memrealtime s[78:79]')
        self.st('start')
        a('s_load_dwordx16 s[4:19], s[0:1], 0'); a('s_load_dwordx8 s[20:27], s[0:1], 64')
        if o.cpf:
            a(f's_getpc_b64 {s(SH,2)}'); a(f's_and_b32 {s(SH)}, {s(SH)}, 0xffffff00'); a(f's_and_b32 {s(SH+1)}, {s(SH+1)}, 0xffff')
            a(f's_mov_b32 {s(SH+2)}, L_cpf_end-{NAME}_kernel'); a(f's_mov_b32 {s(SH+3)}, 0x20000')
            a(f's_lshr_b32 {s(sT)}, s2, 3'); a(f's_lshl_b32 {s(sT)}, {s(sT)}, {7+o.cpf}')
            a('v_lshlrev_b32 v2, 7, v0'); a(f'v_cmp_gt_u32 vcc, {1<<o.cpf}, v0'); a('v_cndmask_b32 v2, -1, v2, vcc')
            a(f'buffer_load_dword v23, v2, {s(SH,4)}, {s(sT)} offen')
        a(f'v_lshrrev_b32 v2, 6, v0'); a(f'v_and_b32 {v(vLane)}, 63, v0')
        a(f'v_readfirstlane_b32 {s(sW)}, v2')
        a(f's_and_b32 {s(sX)}, s2, 7'); a(f's_lshr_b32 {s(sJ)}, s2, 3')
        a(f's_and_b32 {s(sMem)}, {s(sJ)}, 15'); a(f's_lshr_b32 {s(sGb)}, {s(sJ)}, 4')
        a(f's_movk_i32 {s(sC4K)}, 0x1000')
        a(f's_lshl_b32 {s(sCp)}, {s(sX)}, 5'); a(f's_add_u32 {s(sCp)}, {s(sCp)}, {s(sJ)}')
        vTA = 8; vH0 = 9
        a('v_and_b32 v12, 31, v0'); a('v_lshrrev_b32 v13, 5, v0')
        a(f's_lshl_b32 {s(sT)}, {s(sJ)}, 16'); a(f's_lshl_b32 {s(sT+1)}, {s(sX)}, 7'); a(f's_add_u32 {s(sT)}, {s(sT)}, {s(sT+1)}')
        a(f'v_lshlrev_b32 {v(vTA)}, 13, v13'); a(f'v_lshl_add_u32 {v(vTA)}, v12, 2, {v(vTA)}'); a(f'v_add_u32 {v(vTA)}, {s(sT)}, {v(vTA)}')
        for e in range(3): a(f'v_subrev_u32 {v(vH0+e)}, {(3-e)*1024}, {v(vTA)}')
        a(f's_lshl_b32 {s(sT+1)}, {s(sX)}, 9'); a(f'v_lshl_add_u32 v14, v12, 4, {s(sT+1)}')
        a(f'v_and_b32 {v(vB)}, 15, {v(vLane)}'); a(f'v_lshrrev_b32 {v(vGq)}, 4, {v(vLane)}')
        a('v_lshlrev_b32 v5, 4, v0')
        a(f's_and_b32 {s(sT)}, {s(sMem)}, 3'); a(f's_lshl_b32 {s(sRow)}, {s(sT)}, 5')
        a(f's_lshr_b32 {s(sT)}, {s(sW)}, 1'); a(f's_lshl_b32 {s(sT)}, {s(sT)}, 4'); a(f's_add_u32 {s(sRow)}, {s(sRow)}, {s(sT)}')
        a(f's_and_b32 {s(sT)}, {s(sMem)}, 12'); a(f's_add_u32 {s(sRow)}, {s(sRow)}, {s(sT)}')
        a(f's_and_b32 {s(sT)}, {s(sW)}, 1'); a(f's_lshl_b32 {s(sT)}, {s(sT)}, 1'); a(f's_add_u32 {s(sRow)}, {s(sRow)}, {s(sT)}')
        a(f's_lshl_b32 {s(sT)}, {s(sGb)}, 7'); a(f's_add_u32 {s(sRow)}, {s(sRow)}, {s(sT)}')
        a(f's_lshl_b32 {s(sT)}, {s(sRow)}, 10'); a(f'v_lshl_add_u32 {v(vRowA)}, {v(vLane)}, 4, {s(sT)}')
        self.vW2 = 15; self.vW1 = 16
        a(f'v_lshrrev_b32 v20, 3, {v(vLane)}'); a(f'v_and_b32 v21, 1, {v(vGq)}'); a('v_lshlrev_b32 v21, 2, v21')
        a(f'v_and_b32 v15, 7, {v(vLane)}'); a('v_xor_b32 v15, v15, v21'); a('v_lshlrev_b32 v15, 4, v15'); a('v_lshl_add_u32 v15, v20, 10, v15')
        a(f's_mul_i32 {s(sT)}, {s(sW)}, {448*1024}'); a(f's_and_b32 {s(sT+1)}, {s(sMem)}, 7'); a(f's_lshl_b32 {s(sT+1)}, {s(sT+1)}, 7')
        a(f's_add_u32 {s(sT)}, {s(sT)}, {s(sT+1)}'); a(f'v_add_u32 v15, {s(sT)}, v15')
        a(f's_lshl_b32 {s(sWb)}, {s(sW)}, 15')
        a('s_waitcnt lgkmcnt(0)')
        self.st('karg')
        a(f's_load_dword {s(sNonce)}, s[26:27], 0')
        self.srd(SK, 6, 0x200000); self.srd(SV, 8, 0x200000)
        KR, VR, WR = 24, 35, 44
        for e in range(3): a(f'buffer_load_dword {v(KR+e)}, {v(vH0+e)}, {s(SK,4)}, 0 offen')
        for e in range(8): a(f'buffer_load_dword {v(KR+3+e)}, {v(vTA)}, {s(SK,4)}, {s(sC4K) if e>=4 else 0} offen offset:{(e&3)*1024}')
        a(f'global_load_dwordx4 {v(WR,4)}, v14, s[10:11]')
        for e in range(8): a(f'buffer_load_dword {v(VR+e)}, {v(vTA)}, {s(SV,4)}, {s(sC4K) if e>=4 else 0} offen offset:{(e&3)*1024}')
        a(f's_lshl_b32 {s(sT)}, {s(sCp)}, 2'); a(f's_load_dword {s(sD1)}, s[14:15], {s(sT)}')
        self.srd(SH, 12, 0x200000)
        a(f's_lshl_b32 {s(sT)}, {s(sCp)}, 13'); a(f's_add_u32 {s(sT+1)}, {s(sT)}, 4096'); a(f's_lshl_b32 {s(sT+2)}, {s(sW)}, 10')
        for c in range(2):
            a(f's_add_u32 m0, {s(sT+2)}, {L_H+32+c*H_CH}'); a('s_nop 0')
            a(f'buffer_load_dwordx4 v5, {s(SH,4)}, {s(sT+c)} offen lds', tag='h')
        self.srd(SWS, 26, 0x10000000)
        a(f's_lshl_b32 {s(sT)}, {s(sX)}, 21'); a(f's_add_u32 {s(sT)}, {s(sT)}, {WS_AR}')
        a(f's_add_u32 {s(SAR)}, s26, {s(sT)}'); a(f's_addc_u32 {s(SAR+1)}, s27, 0'); a(f's_and_b32 {s(SAR+1)}, {s(SAR+1)}, 0xffff')
        a(f's_mov_b32 {s(SAR+2)}, {AR_STRIDE}'); a(f's_mov_b32 {s(SAR+3)}, 0x20000')
        if o.apf:
            a(f's_lshl_b32 {s(sT)}, {s(sJ)}, 13'); a(f's_lshl_b32 {s(sT+1)}, {s(sW)}, 11'); a(f's_add_u32 {s(sT)}, {s(sT)}, {s(sT+1)}')
            a(f'v_lshl_add_u32 v20, {v(vB)}, 7, {s(sT)}')
            a(f'v_lshlrev_b32 v21, 7, {v(vB)}'); a(f'v_add_u32 v21, {AR_FL+0x2000-0x200}, v21')
            a(f'v_cmp_gt_u32 vcc, 16, {v(vLane)}'); a('v_cndmask_b32 v20, v21, v20, vcc')
            a('s_mov_b64 exec, 0xffffff')
            a(f'buffer_load_dword v22, v20, {s(SAR,4)}, 0 offen sc1')
            a('s_mov_b64 exec, -1')
        if o.poison:
            a('v_mov_b32 v104, -1'); a('v_mov_b32 v105, -1'); a('v_mov_b32 v106, -1'); a('v_mov_b32 v107, -1')
            a(f's_lshl_b32 {s(sT)}, {s(sCp)}, 13'); a(f's_add_u32 {s(sT)}, {s(sT)}, {WS_Y}'); a(f's_add_u32 {s(sT+1)}, {s(sT)}, 4096')
            for c in range(2): a(f'buffer_store_dwordx4 v[104:107], v5, {s(SWS,4)}, {s(sT+c)} offen sc1')
        self.srd(SQ, 4, 0x200000)
        a(f's_lshl_b32 {s(sT)}, {s(sX)}, 18')
        for r in range(2): a(f'buffer_load_dwordx4 {v(112+4*r,4)}, {v(vRowA)}, {s(SQ,4)}, {s(sT)} offen offset:{1024*r}')
        self.srd(SW2, 20, 0x1c0000)
        self.wstream_reset()
        a.add(flat(self.D(o.d0)))
        self.srd(SW1, 18, 0x1c0000)
        a(f's_cmp_ge_u32 {s(sMem)}, 14'); a(f's_cselect_b32 {s(SW1+2)}, 0, {s(SW1+2)}')
        a(f's_lshl_b32 {s(sT)}, {s(sX)}, 18'); a(f's_add_u32 {s(SO)}, s22, {s(sT)}'); a(f's_addc_u32 {s(SO+1)}, s23, 0'); a(f's_and_b32 {s(SO+1)}, {s(SO+1)}, 0xffff')
        a(f's_mov_b32 {s(SO+2)}, 0x40000'); a(f's_mov_b32 {s(SO+3)}, 0x20000')
        a(f'v_lshlrev_b32 v16, 2, {v(vGq)}'); a(f'v_xor_b32 v16, v16, {v(vB)}'); a('v_lshlrev_b32 v16, 4, v16')
        a(f's_movk_i32 {s(sT)}, 3584'); a(f'v_mad_u32_u24 v16, {v(vGq)}, {s(sT)}, v16')
        a(f's_mul_i32 {s(sT)}, {s(sW)}, {128*3584}'); a(f's_lshl_b32 {s(sT+1)}, {s(sMem)}, 8'); a(f's_add_u32 {s(sT)}, {s(sT)}, {s(sT+1)}')
        a(f'v_add_u32 v16, {s(sT)}, v16')
        a(f's_mul_i32 {s(sT)}, {s(sW)}, {U_PAR}'); a(f's_add_u32 {s(sT)}, {s(sT)}, {L_U}')
        a(f'v_lshl_add_u32 v19, {v(vLane)}, 2, {s(sT)}'); a('v_mov_b32 v20, 0')
        a(f's_lshr_b32 {s(sT)}, {s(sW)}, 1'); a(f's_mul_i32 {s(sT)}, {s(sT)}, {H_CH}'); a(f's_and_b32 {s(sT+1)}, {s(sW)}, 1'); a(f's_lshl_b32 {s(sT+1)}, {s(sT+1)}, 4')
        a(f's_add_u32 {s(sT)}, {s(sT)}, {s(sT+1)}'); a(f's_add_u32 {s(sT)}, {s(sT)}, {L_H-240}')
        a(f'v_lshl_add_u32 v21, {v(vLane)}, 2, {s(sT)}'); a(f'v_cmp_gt_u32 vcc, 60, {v(vLane)}'); a('v_cndmask_b32 v19, v21, v19, vcc')
        a('ds_write_b32 v19, v20')
        for p in range(8):
            a(f's_add_u32 {s(sT)}, {s(sX)}, {p}'); a(f's_and_b32 {s(sT)}, {s(sT)}, 7'); a(f's_lshl_b32 {s(sKO+p)}, {s(sT)}, 11')
        a(f's_sub_u32 {s(sT)}, {s(sX)}, 6'); a(f's_cselect_b32 {s(sT)}, {s(sX)}, {s(sT)}')
        for p in range(6):
            a(f's_add_u32 {s(sT+1)}, {s(sT)}, 8'); a(f's_lshl_b32 {s(sKO+8+p)}, {s(sT+1)}, 11')
            if p < 5:
                a(f's_add_u32 {s(sT)}, {s(sT)}, 1'); a(f's_cmp_eq_u32 {s(sT)}, 6'); a(f's_cselect_b32 {s(sT)}, 0, {s(sT)}')
        a(f's_mul_i32 {s(sNonce)}, {s(sNonce)}, 0x9e3779b1'); a(f's_add_u32 {s(sNonce)}, {s(sNonce)}, 0x7f4a7c15')
        a(f's_and_b32 {s(sNonce)}, {s(sNonce)}, 0xfffffff0')
        a(f's_lshl_b32 {s(sD0)}, {s(sD1)}, 16'); a(f's_and_b32 {s(sD1)}, {s(sD1)}, 0xffff0000')
        if o.mode == 'auto':
            a(f's_getreg_b32 {s(sT)}, hwreg(HW_REG_XCC_ID, 0, 4)'); a(f's_or_b32 {s(sExp)}, {s(sNonce)}, {s(sT)}')
            a(f's_lshl_b32 {s(sT)}, {s(sCp)}, 2'); a(f's_add_u32 {s(sT)}, {s(sT)}, {WS_XF}')
            a(f'v_mov_b32 v20, {s(sExp)}'); a(f'v_cmp_eq_u32 vcc, 0, v0'); a(f'v_mov_b32 v21, {s(sT)}'); a('v_cndmask_b32 v21, -1, v21, vcc')
            a(f'buffer_store_dword v20, v21, {s(SWS,4)}, 0 offen sc1')
        self.st('issued')
        WP, KP, VP, SS = 48, 56, 78, 94
        L = self.unpack_l(KP, KR, 11)
        L += self.stamp('kv')
        for j in range(4):
            for c in range(2):
                src = WR + 2 * c + (j >> 1)
                L.append(f'v_lshlrev_b32 {v(WP+2*j+c)}, 16, {v(src)}' if j % 2 == 0 else f'v_and_b32 {v(WP+2*j+c)}, 0xffff0000, {v(src)}')
        for t in range(8): L.append(f'v_pk_mul_f32 {v(SS+2*t,2)}, {v(WP,2)}, {v(KP+2*(t+3),2)}')
        for j in (1, 2, 3):
            for t in range(8): L.append(f'v_pk_fma_f32 {v(SS+2*t,2)}, {v(WP+2*j,2)}, {v(KP+2*(t+3-j),2)}, {v(SS+2*t,2)}')
        L += self.unpack_l(VP, VR, 8)
        if o.mode == 'auto':
            L += [f's_lshl_b32 {s(sT)}, {s(sX)}, 7', f's_add_u32 {s(sT)}, {s(sT)}, {WS_XF}', f's_add_u32 {s(sT+1)}, {s(sT)}, 64']
        for t in range(8): L.append(f'v_pk_mul_f32 {v(SS+2*t,2)}, {v(SS+2*t,2)}, {v(VP+2*t,2)}')
        for c in range(2):
            for jj in range(4): L.append(f'v_cvt_pk_bf16_f32 {v(24+4*c+jj)}, {v(SS+2*(7-2*jj)+c)}, {v(SS+2*(6-2*jj)+c)}')
        a('v_and_b32 v19, 7, v12'); a('v_xor_b32 v19, v19, v13'); a('v_lshlrev_b32 v19, 4, v19'); a('v_lshl_add_u32 v19, v12, 8, v19')
        a(f'v_add_u32 v19, {L_TB}, v19')
        a('v_lshrrev_b32 v20, 3, v0'); a('v_and_b32 v21, 7, v0')
        a('v_bfe_u32 v6, v0, 4, 3'); a('v_xor_b32 v6, v6, v21'); a('v_lshlrev_b32 v6, 4, v6'); a('v_lshl_add_u32 v6, v20, 7, v6')
        a(f'v_add_u32 v6, {L_TB}, v6')
        a(f's_lshl_b32 {s(sT)}, {s(sJ)}, 7')
        a('v_lshlrev_b32 v20, 12, v20'); a('v_lshl_add_u32 v20, v21, 4, v20'); a(f'v_add_u32 v20, {s(sT)}, v20')
        a(f's_and_b32 {s(sT)}, {s(sW)}, 1'); a(f's_lshl_b32 {s(sT)}, {s(sT)}, 7'); a(f's_add_u32 {s(sT)}, {s(sT)}, 1')
        a(f'v_lshl_add_u32 v8, {v(vGq)}, 5, {v(vB)}'); a(f'v_add_u32 v8, {s(sT)}, v8')
        a('v_and_b32 v9, 1, v8'); a('v_lshlrev_b32 v9, 4, v9'); a('v_and_b32 v8, -2, v8')
        a(f's_lshr_b32 {s(sT)}, {s(sW)}, 1'); a(f's_mul_i32 {s(sT)}, {s(sT)}, {H_CH}'); a(f's_add_u32 {s(sT)}, {s(sT)}, {L_H}')
        a(f'v_lshl_add_u32 v8, v8, 1, {s(sT)}')
        a.add(L)
        a('ds_write_b128 v19, v[24:27]'); a('ds_write_b128 v19, v[28:31] offset:128')
        a.wait_vm('h')
        a('s_waitcnt lgkmcnt(0)'); a('s_barrier')
        a('ds_read_b128 v[32:35], v6'); a('ds_read_b128 v[36:39], v6 offset:4096')

    def body(self):
        a = self.a; o = self.o; SC = self.SC
        AF = 128; XF = 120
        a(f's_mov_b32 {s(sT)}, {32*4096}')
        a(f'buffer_store_dwordx4 v[32:35], v20, {s(SAR,4)}, 0 offen{SC}')
        a(f'buffer_store_dwordx4 v[36:39], v20, {s(SAR,4)}, {s(sT)} offen{SC}')
        self.st('T')
        def hrd(i):
            L = []
            if i and i % 2 == 0: L.append('v_add_u32 v8, 1024, v8')
            b = (i & 1) * 128
            for k in range(0, 16, 2): L.append(f'ds_read2_b32 {v(AF+16*i+k,2)}, v8 offset0:{b+k} offset1:{b+k+1}')
            L.append(f'ds_read_b32 {v(XF+i)}, v8 offset:{(b+16)*4}')
            return L
        def hal(i):
            return [f'v_alignbit_b32 {v(AF+16*i+k)}, {v(AF+16*i+k+1 if k<15 else XF+i)}, {v(AF+16*i+k)}, v9' for k in range(16)]
        fs1 = 2 if self.local else 7
        F1 = AR_FL + 0x2000 - 0x200 if self.local else AR_FL
        a(f's_lshl_b32 {s(sT)}, {s(sJ)}, {fs1}'); a(f's_add_u32 {s(sT)}, {s(sT)}, {F1}')
        a(f'v_mov_b32 v21, {s(sT)}'); a('v_cmp_eq_u32 vcc, 0, v0'); a(f's_mov_b32 {s(sT)}, {F1}'); a(f'v_lshl_add_u32 v22, v12, {fs1}, {s(sT)}')
        a('v_cndmask_b32 v21, -1, v21, vcc')
        a(f's_lshl_b32 {s(sT)}, {s(sCp)}, 4'); a(f's_add_u32 {s(sT)}, {s(sT)}, {WS_PF}'); a(f'v_mov_b32 v23, {s(sT)}'); a('v_cndmask_b32 v23, -1, v23, vcc')
        nh1 = o.nh1
        for i in range(nh1):
            a.add(hrd(i))
            if i: a.add(hal(i - 1))
        a(f's_add_u32 {s(sExp)}, {s(sNonce)}, 1'); a(f'v_mov_b32 v2, {s(sExp)}')
        a('s_waitcnt vmcnt(0)'); a('s_barrier')
        self.st('ack1')
        a(f'buffer_store_dword v2, v21, {s(SAR,4)}, 0 offen{SC}')
        if o.poison: a(f'buffer_store_dword v2, v23, {s(SWS,4)}, 0 offen sc1')
        self.stop(1)
        for i in range(nh1, 8):
            a.add(hrd(i))
            if i: a.add(hal(i - 1))
        a.add(hal(7))
        self.vT2 = 9; vBB = 11; vUD = 12
        a(f'v_bfe_u32 v20, {v(vLane)}, 2, 2'); a(f'v_lshrrev_b32 v21, 5, {v(vLane)}'); a('v_lshl_add_u32 v21, v21, 3, v20')
        a(f'v_lshl_add_u32 v9, v21, 7, {s(sWb)}')
        a(f'v_and_b32 v6, 1, {v(vGq)}'); a('v_lshl_add_u32 v9, v6, 5, v9')
        a(f'v_and_b32 v6, 3, {v(vLane)}'); a('v_lshl_add_u32 v9, v6, 3, v9')
        a('v_lshrrev_b32 v6, 1, v20'); a('v_lshl_add_u32 v9, v6, 6, v9')
        a('v_xor_b32 v10, 64, v9')
        a('v_and_b32 v21, 1, v0'); a(f'v_mul_u32_u24 v21, {U_PAR}, v21'); a('v_lshrrev_b32 v6, 1, v0'); a('v_lshl_add_u32 v21, v6, 4, v21')
        a(f'v_add_u32 v21, {L_U+240}, v21')
        a(f's_lshr_b32 {s(sT)}, {s(sW)}, 1'); a(f's_mul_i32 {s(sT)}, {s(sT)}, {U_CH}'); a(f's_and_b32 {s(sT+1)}, {s(sW)}, 1'); a(f's_lshl_b32 {s(sT+1)}, {s(sT+1)}, 7')
        a(f's_sub_u32 {s(sT)}, {s(sT)}, {s(sT+1)}'); a(f's_add_u32 {s(sT)}, {s(sT)}, {L_U+14*16}')
        a(f'v_lshlrev_b32 v6, 1, {v(vGq)}'); a(f'v_sub_u32 v6, {v(vB)}, v6'); a(f'v_lshl_add_u32 {v(vBB)}, v6, 4, {s(sT)}')
        a(f's_lshl_b32 {s(sT)}, {s(sW)}, 9'); a(f's_add_u32 {s(sT)}, {s(sT)}, {L_U+240+8}')
        a(f'v_lshl_add_u32 {v(vUD)}, {v(vB)}, 4, {s(sT)}')
        a(f'v_lshrrev_b32 v6, 1, {v(vGq)}'); a(f'v_mul_u32_u24 v6, {U_PAR}, v6'); a(f'v_add_u32 {v(vUD)}, {v(vUD)}, v6')
        a(f'v_and_b32 v6, 1, {v(vGq)}'); a('v_lshlrev_b32 v6, 3, v6'); a(f'v_sub_u32 {v(vUD)}, {v(vUD)}, v6')
        a(f's_lshl_b32 {s(sT)}, {s(sJ)}, 13'); a(f's_add_u32 {s(sT+1)}, {s(sT)}, 4096')
        self.st('hdone')
        self.spin([f'buffer_load_dword v2, v22, {s(SAR,4)}, 0 offen sc1'], self.flagcheck())
        self.st('S1')
        a(f'buffer_load_dwordx4 v[88:91], v5, {s(SAR,4)}, {s(sT)} offen sc1')
        a(f'buffer_load_dwordx4 v[92:95], v5, {s(SAR,4)}, {s(sT+1)} offen sc1')
        ntr = o.d0 // 2
        a.add(flat(self.D(o.d1)))
        for k in range(ntr): a.add(self.w2a_tr(k))
        a('ds_write_b128 v21, v[88:91]'); a(f'ds_write_b128 v21, v[92:95] offset:{U_CH}')
        a('s_waitcnt lgkmcnt(0)'); a('s_barrier')
        self.st('Uld')
        ACC, BR, UD, UF = 24, 56, 96, 104
        def bread(m, r):
            par = (31 - r) & 1; add = ((31 - r) >> 1) - 14
            return (f'ds_read_b128 {v(BR+4*m,4)}, {v(vBB)} offset:{par*U_PAR+(16*m+add)*16}', 'br')
        for m in range(8): a.add([bread(m, 0)])
        for n2 in range(2):
            for c in range(2): a(f'ds_read_b64 {v(UD+4*n2+2*c,2)}, {v(vUD)} offset:{c*U_CH+n2*256}')
        main = []
        for r in range(4):
            for m in range(8):
                for i in range(8 - m):
                    C = v(ACC + 4 * (i + m), 4)
                    it = [f'v_mfma_f32_16x16x32_bf16 {C}, {v(AF+16*i+4*r,4)}, {v(BR+4*m,4)}, {"0" if (r==0 and m==0) else C}']
                    if i == 7 - m and r < 3: it.append(bread(m, r + 1))
                    if r == 3 and m == 1 and i == 0: it += [waitds('br'), 's_barrier']
                    main.append(it)
        fill = []
        for g in self.interleave_w(o.d2, ntr): fill.append(g)
        ex = []
        for n2 in range(2):
            for c in range(2):
                b = 88 + 0
        if o.poison:
            main[100] = main[100] + [f's_mov_b32 {s(sT)}, {WS_PF}', f'buffer_load_dword v19, v5, {s(SWS,4)}, {s(sT)} offen sc1']
        a.add(interleave(main, fill, start=0, end=140))
        self.st('convmf')
        a(f's_lshl_b32 {s(sT)}, {s(sW)}, 13'); a(f's_add_u32 {s(sT)}, {s(sT)}, {L_P}'); a(f'v_lshl_add_u32 v20, {v(vLane)}, 4, {s(sT)}')
        a(f's_lshl_b32 {s(sT)}, {s(sW)}, 11'); a(f's_add_u32 {s(sT)}, {s(sT)}, {L_P}'); a(f'v_lshl_add_u32 v21, {v(vLane)}, 4, {s(sT)}')
        for N in range(8): a(f'ds_write_b128 v20, {v(ACC+4*N,4)} offset:{N*1024}')
        UF = 128
        for n2 in range(2):
            for c in range(2):
                b = UF + 8 * n2 + 4 * c; sr = UD + 4 * n2 + 2 * c
                a(f'v_and_b32 {v(b+0)}, 0xffff0000, {v(sr+1)}'); a(f'v_lshlrev_b32 {v(b+1)}, 16, {v(sr+1)}')
                a(f'v_and_b32 {v(b+2)}, 0xffff0000, {v(sr)}'); a(f'v_lshlrev_b32 {v(b+3)}, 16, {v(sr)}')
        a(f's_lshl_b32 {s(sT)}, {s(sCp)}, 13'); a(f's_lshl_b32 {s(sT+1)}, {s(sW)}, 11'); a(f's_add_u32 {s(sT)}, {s(sT)}, {s(sT+1)}'); a(f's_add_u32 {s(sT)}, {s(sT)}, {WS_Y}')
        a(f'v_lshlrev_b32 v22, 4, {v(vLane)}')
        if o.poison:
            Lok = a.lab('pfok')
            a(f'v_subrev_u32 v19, {s(sExp)}, v19'); a('v_cmp_gt_u32 vcc, 16, v19'); a('s_cmp_eq_u64 vcc, exec'); a(f's_cbranch_scc1 {Lok}')
            a.cond_begin()
            a(f's_mov_b32 {s(sT+1)}, {WS_PF}')
            self.spin([f'buffer_load_dword v2, v5, {s(SWS,4)}, {s(sT+1)} offen sc1'], self.flagcheck())
            a.cond_end()
            a(f'{Lok}:')
        a('s_waitcnt lgkmcnt(0)'); a('s_barrier')
        for n2 in range(2):
            for w in range(4): a(f'ds_read_b128 {v(BR+16*n2+4*w,4)}, v21 offset:{w*8192+n2*1024}')
        for n2 in range(2):
            for c in range(2):
                p = BR + 16 * n2 + 8 * c; b = UF + 8 * n2 + 4 * c
                for r in range(4): a(f'v_fma_f32 {v(b+r)}, {v(b+r)}, {s(sD0+c)}, {v(p+r)}')
                for r in range(0, 4, 2): a(f'v_pk_add_f32 {v(b+r,2)}, {v(b+r,2)}, {v(p+4+r,2)}')
            for r in range(4): a(f'v_cvt_pk_bf16_f32 {v(88+4*n2+r)}, {v(UF+8*n2+r)}, {v(UF+8*n2+4+r)}')
            if o.poison:
                for r in range(4): a(f'v_min_u32 {v(88+4*n2+r)}, -2, {v(88+4*n2+r)}')
            a(f'buffer_store_dwordx4 {v(88+4*n2,4)}, v22, {s(SWS,4)}, {s(sT)} offen offset:{n2*1024} sc1')
        self.st('conv')
        a.add(flat(self.interleave_w(o.d3, None)))
        RX, RN, RY, RT = 24, 40, 56, 72
        self.unpack(RX, 112, 8)
        self.ln_stats(RX, RT)
        self.ln_apply(RN, RX)
        a(f's_lshl_b32 {s(sT)}, {s(sX)}, 10'); a(f's_and_b32 {s(sT+1)}, {s(sMem)}, 12'); a(f's_lshl_b32 {s(sT+1)}, {s(sT+1)}, 6'); a(f's_add_u32 {s(sT)}, {s(sT)}, {s(sT+1)}')
        a(f's_lshl_b32 {s(sT+1)}, {s(sGb)}, 7'); a(f's_add_u32 {s(sT)}, {s(sT)}, {s(sT+1)}')
        a(f's_and_b32 {s(sT+1)}, {s(sMem)}, 3'); a(f's_lshl_b32 {s(sT+1)}, {s(sT+1)}, 5'); a(f's_add_u32 {s(sT)}, {s(sT)}, {s(sT+1)}')
        a(f's_add_u32 {s(sT+2)}, {s(sT)}, {WS_Y}'); a(f's_add_u32 {s(sT+3)}, {s(sT+2)}, {128*8192}')
        a('v_lshrrev_b32 v20, 1, v0'); a('v_and_b32 v21, 1, v0')
        a('v_lshlrev_b32 v22, 13, v20'); a('v_lshl_add_u32 v22, v21, 4, v22')
        a('v_lshlrev_b32 v21, 12, v21'); a('v_lshl_add_u32 v21, v20, 2, v21'); a(f'v_add_u32 v21, {L_YL}, v21')
        a(f's_lshl_b32 {s(sT)}, {s(sW)}, 11'); a(f's_add_u32 {s(sT)}, {s(sT)}, {L_YL}'); a(f'v_lshl_add_u32 v20, {v(vLane)}, 4, {s(sT)}')
        gl = [f'buffer_load_dwordx4 v[88:91], v22, {s(SWS,4)}, {s(sT+2)} offen sc1', f'buffer_load_dwordx4 v[92:95], v22, {s(SWS,4)}, {s(sT+3)} offen sc1']
        if not o.poison:
            a(f's_add_u32 {s(sExp)}, {s(sNonce)}, 2'); a(f'v_mov_b32 v2, {s(sExp)}')
            a('s_waitcnt vmcnt(0)'); a('s_barrier')
            a(f'buffer_store_dword v2, v23, {s(SWS,4)}, 0 offen sc1')
            self.stop(2)
            a(f's_mov_b32 {s(sT+1)}, {WS_PF}')
            self.spin([f'buffer_load_dword v2, v5, {s(SWS,4)}, {s(sT+1)} offen sc1'], self.flagcheck())
            a('s_barrier')
            self.st('S2')
            a.add(gl)
        else:
            a('s_barrier')
            self.st('S2')
            chk = ['s_waitcnt vmcnt(0)', 'v_max3_u32 v2, v88, v89, v90', 'v_max3_u32 v6, v91, v92, v93', 'v_max3_u32 v2, v2, v94, v95', 'v_max_u32 v2, v2, v6',
                   'v_cmp_ne_u32 vcc, -1, v2', 's_cmp_eq_u64 vcc, exec']
            self.spin(gl, chk)
        a.add(flat(self.interleave_w(o.d4, None)))
        for e in range(2):
            for k in range(4): a(f'ds_write_b32 v21, {v(88+4*e+k)} offset:{k*1024+e*512}')
        a('s_waitcnt lgkmcnt(0)'); a('s_barrier')
        a(f'ds_read_b128 {v(RST+8,4)}, v20'); a(f'ds_read_b128 {v(RST+12,4)}, v20 offset:1024')
        self.st('Yld')
        a.add(flat(self.interleave_w(64 - self.wi, None)))

        vXD = 8; XA = 96; vHS = 6; vHL = 13; vRW = 11; vRR = 12; vFO = 5
        def ffn_addrs():
            fs = 2 if self.local else 6
            a(f's_lshl_b32 {s(sT)}, {s(sGb)}, {6+fs}'); a(f's_add_u32 {s(sT)}, {s(sT)}, {AR_FL+0x2000}')
            a(f'v_lshl_add_u32 {v(vPollF)}, {v(vLane)}, {fs}, {s(sT)}')
            a(f's_lshl_b32 {s(sT+1)}, {s(sMem)}, 2'); a(f's_add_u32 {s(sT+1)}, {s(sT+1)}, {s(sW)}')
            a(f'v_cmp_eq_u32 vcc, {s(sT+1)}, {v(vLane)}'); a(f'v_cndmask_b32 {v(vMyF)}, -1, {v(vPollF)}, vcc')
            a(f's_lshl_b32 {s(sT)}, {s(sW)}, 2'); a(f'v_add_u32 v20, {s(sT)}, {v(vGq)}')
            a(f'v_xor_b32 v21, v20, {v(vB)}'); a('v_lshlrev_b32 v21, 4, v21'); a(f'v_lshl_add_u32 {v(vXD)}, v20, 10, v21')
            a(f's_lshl_b32 {s(sT)}, {s(sGb)}, 17'); a(f'v_add_u32 {v(vXD)}, {s(sT)}, {v(vXD)}')
            a(f'v_and_b32 v20, 31, {v(vLane)}'); a(f'v_lshrrev_b32 v21, 5, {v(vLane)}')
            a(f'v_xor_b32 v22, v21, {v(vB)}'); a('v_lshlrev_b32 v22, 4, v22'); a(f'v_lshl_add_u32 v22, v20, 8, v22')
            for e in range(8):
                a(f's_lshr_b32 {s(sT)}, {s(sKO+e)}, 6'); a(f'v_xor_b32 {v(XA+e)}, {s(sT)}, v22')
            a(f's_mul_i32 {s(sT+2)}, {s(sGb)}, {4*HF_TT}'); a(f's_add_u32 {s(sT+2)}, {s(sT+2)}, {AR_HF}')
            a(f's_lshl_b32 {s(sT)}, {s(sMem)}, 13'); a(f's_lshl_b32 {s(sT+1)}, {s(sW)}, 11'); a(f's_add_u32 {s(sT)}, {s(sT)}, {s(sT+1)}'); a(f's_add_u32 {s(sT)}, {s(sT)}, {s(sT+2)}')
            a(f'v_lshl_add_u32 {v(vHS)}, {v(vLane)}, 4, {s(sT)}')
            a(f's_lshr_b32 {s(sT)}, {s(sMem)}, 3'); a(f's_mul_i32 {s(sT)}, {s(sT)}, {2*HF_TT}'); a(f's_mul_i32 {s(sT+1)}, {s(sW)}, 28672'); a(f's_add_u32 {s(sT)}, {s(sT)}, {s(sT+1)}')
            a(f's_add_u32 {s(sT)}, {s(sT)}, {s(sT+2)}')
            a(f'v_lshl_add_u32 {v(vHL)}, {v(vLane)}, 4, {s(sT)}'); a(f'v_add_u32 {v(vHL+1)}, {HF_TT}, {v(vHL)}')
            a(f'v_and_b32 v22, 7, {v(vLane)}'); a('v_xor_b32 v22, v22, v21'); a('v_lshlrev_b32 v22, 4, v22'); a('v_lshl_add_u32 v22, v20, 8, v22')
            a(f's_lshl_b32 {s(sT)}, {s(sW)}, 13'); a(f's_add_u32 {s(sT)}, {s(sT)}, 65536'); a(f'v_add_u32 {v(vRW)}, {s(sT)}, v22')
            a('v_lshrrev_b32 v20, 3, v0'); a('v_and_b32 v21, 7, v0'); a('v_and_b32 v22, 7, v20'); a('v_lshlrev_b32 v23, 1, v21'); a('v_xor_b32 v22, v22, v23')
            a('v_lshlrev_b32 v22, 4, v22'); a(f'v_lshl_add_u32 {v(vRR)}, v20, 8, v22'); a(f'v_add_u32 {v(vRR)}, 65536, {v(vRR)}')
            a(f's_lshr_b32 {s(sT)}, {s(sJ)}, 3'); a(f's_lshl_b32 {s(sT)}, {s(sT)}, 16'); a(f's_and_b32 {s(sT+1)}, {s(sMem)}, 7'); a(f's_lshl_b32 {s(sT+1)}, {s(sT+1)}, 7')
            a(f's_add_u32 {s(sT)}, {s(sT)}, {s(sT+1)}'); a('v_lshlrev_b32 v20, 10, v20'); a('v_lshl_add_u32 v20, v21, 4, v20'); a(f'v_add_u32 {v(vFO)}, {s(sT)}, v20')
            a(f'v_bfe_u32 v20, {v(vLane)}, 2, 2'); a(f'v_lshrrev_b32 v21, 5, {v(vLane)}'); a('v_lshl_add_u32 v21, v21, 3, v20')
            a(f'v_xor_b32 v22, {s(sW)}, v20'); a('v_lshlrev_b32 v22, 6, v22'); a('v_lshl_add_u32 v19, v21, 8, v22')
            a(f'v_and_b32 v22, 1, {v(vGq)}'); a('v_lshl_add_u32 v19, v22, 5, v19')
            a(f'v_and_b32 v22, 1, {v(vLane)}'); a('v_lshl_add_u32 v19, v22, 4, v19')
            a(f'v_bfe_u32 v22, {v(vLane)}, 1, 1'); a('v_lshl_add_u32 v19, v22, 3, v19')
            a('v_add_u32 v23, 0x10000, v19')
            a(f's_mul_i32 {s(sT)}, {s(sW)}, {32768-8192}'); a(f'v_subrev_u32 v9, {s(sT)}, v9'); a(f'v_subrev_u32 v10, {s(sT)}, v10')

        def r_tail(layer):
            for i in range(8): a(f'v_pk_fma_f32 {v(RX+2*i,2)}, {v(RN+2*i,2)}, {v(RY+2*i,2)}, {v(RX+2*i,2)}')
            self.ln_stats(RX, RT)
            self.ln_apply(RN, RX)
            self.pack(80, RN, 8)
            for r in range(2): a(f'buffer_store_dwordx4 {v(80+4*r,4)}, {v(vRowA)}, {s(SAR,4)}, 0 offen offset:{1024*r}{SC}')
            self.pack(RST, RX, 8)

        order = [0, 2, 1, 3]
        XB = 56; NB = 6; ET = 80; PK = 88
        def epi(sl, layer):
            A0 = 24 + 16 * (sl & 1); L = []
            hs = ' sc1' if (layer == 0 and not o.hloc) else SC
            for q in range(4):
                t = ET + 4 * (q & 1)
                for e in range(4): L.append(f'v_mul_f32 {v(t+e)}, 0xbfb8aa3b, {v(A0+4*q+e)}')
                for e in range(4): L.append(f'v_exp_f32 {v(t+e)}, {v(t+e)}')
                for e in range(4): L.append(f'v_add_f32 {v(t+e)}, 1.0, {v(t+e)}')
                for e in range(4): L.append(f'v_rcp_f32 {v(t+e)}, {v(t+e)}')
                for e in range(4): L.append(f'v_mul_f32 {v(t+e)}, {v(t+e)}, {v(A0+4*q+e)}')
                for e in range(2): L.append(f'v_cvt_pk_bf16_f32 {v(PK+2*q+e)}, {v(t+2*e)}, {v(t+2*e+1)}')
                if q & 1:
                    st = []
                    if q == 1: st.append(f's_mov_b32 {s(sT+3)}, {order[sl]*HF_TT}')
                    st.append(f'buffer_store_dwordx4 {v(PK+4*(q>>1),4)}, {v(vHS)}, {s(SAR,4)}, {s(sT+3)} offen offset:{(q>>1)*1024}{hs}')
                    L.append(st)
            return L
        wt = lambda f: 2 if isinstance(f, str) and f.startswith(TRANS) else 1

        def g1(layer):
            Lskip = a.lab('g1skip'); Ldone = a.lab('g1done')
            a(f's_cmp_ge_u32 {s(sMem)}, 14'); a(f's_cbranch_scc1 {Lskip}')
            a(f's_lshl_b32 {s(sT+2)}, {s(sW)}, 10')
            a.add([forget('x')])
            xd = []
            for sl, tt in enumerate(order):
                for kq in range(4):
                    for b in range(2):
                        g = [f's_add_u32 m0, {s(sT+2)}, {sl*32768+kq*8192+b*4096-kq*256}']
                        g.append(f's_mov_b32 {s(sT+b)}, {tt*32768+b*16384}' if kq == 0 else 's_nop 0')
                        g.append((f'buffer_load_dwordx4 {v(vXD)}, {s(SAR,4)}, {s(sT+b)} offen offset:{kq*256} sc1 lds', f'x{sl}_{kq}'))
                        xd.append(g)
            bar = {(0, 0): 'x0_0', (0, 1): 'x0_1', (0, 2): 'x0_3', (1, 0): 'x1_1', (1, 2): 'x1_3', (2, 0): 'x3_3'}
            def rd(i):
                sl, ks = divmod(i, 32)
                pre = []
                if ks % 8 == 0 and (sl, ks // 8) in bar: pre = [waitvm(bar[(sl, ks // 8)]), 's_barrier']
                if sl == 2 and ks < 8: pre.append(f'v_xor_b32 {v(XA+ks)}, 0x10000, {v(XA+ks)}')
                return pre + [f'ds_read_b128 {v(XB+4*(i%NB),4)}, {v(XA+(ks&7))} offset:{(sl&1)*32768+(ks>>3)*8192}']
            n0 = o.xd0
            a.add(flat(xd[:n0])); xi = n0
            for i in range(NB - 1): a.add(rd(i))
            self.st(f'g1go{layer}')
            allm = []
            for i in range(128):
                sl, ks = divmod(i, 32); C = v(24 + 16 * (sl & 1), 16)
                it = []
                if i + NB - 1 < 128: it += rd(i + NB - 1)
                it.append(f'v_mfma_f32_32x32x16_bf16 {C}, {ac(4*ks,4)}, {v(XB+4*(i%NB),4)}, {"0" if ks==0 else C}')
                if xi < 32 and i % 2 == 0: it += xd[xi]; xi += 1
                allm.append(it)
            if layer == 0:
                w = self.D(24)
                pos = [o.wb0 + (k * (o.wb1 - o.wb0)) // 24 for k in range(24)]
                assert pos[8] >= 44 and pos[16] >= 76
                allm[75] = allm[75] + ['s_barrier']
                for k in range(24): allm[pos[k]] = allm[pos[k]] + w[k]
            x3st = [f'buffer_store_dwordx4 {v(RST+4*r,4)}, {v(vRowA)}, {s(SO,4)}, 0 offen offset:{1024*r} sc1' for r in range(2)]
            ep = [f'v_mov_b32 v20, {s(sNonce)}', 'v_or_b32 v21, s2, v0', 'v_cmp_eq_u32 vcc, 0, v21', 'v_cndmask_b32 v21, -1, v21, vcc',
                  f'buffer_store_dword v20, v21, {s(SWS,4)}, 0 offen sc1']
            if layer == 1:
                allm[62] = allm[62] + x3st[:1]; allm[63] = allm[63] + x3st[1:]
                allm[0] = allm[0] + ep[:3]; allm[1] = allm[1] + ep[3:4]; allm[64] = allm[64] + ep[4:]
            for sl in range(4):
                main = allm[32 * sl:32 * sl + 32]
                a.add(interleave(main, epi(sl - 1, layer), start=3, end=31, weight=wt) if sl else flat(main))
            self.st(f'g1mf{layer}')
            for e in range(8): a(f'v_xor_b32 {v(XA+e)}, 0x10000, {v(XA+e)}')
            a.add(flat(epi(3, layer)))
            a(f's_branch {Ldone}')
            a(f'{Lskip}:')
            if layer == 0:
                self.wi = 64
                a.add(flat(self.D(24)))
            else:
                a.add(x3st)
            a(f'{Ldone}:')

        def w2b_tr():
            a(f'v_add_u32 v20, {L_AUX}, v9'); a(f'v_add_u32 v21, {L_AUX}, v10')
            for k in range(12):
                for dt in range(2):
                    for u in range(2):
                        ad = 20 + dt if k < 4 else 9 + dt
                        off = (k & 3) * 2048 + u * 512 + (32768 if k >= 8 else 0)
                        a(f'ds_read_b64_tr_b16 {self.w2reg(16+k,dt,2*u,2)}, {v(ad)} offset:{off}')

        def g2(layer):
            HB = 104; NH = 8; AC2 = [[24, 56], [40, 72]]
            def ld(i):
                hf, ks = divmod(i, 28)
                return [f'buffer_load_dwordx4 {v(HB+4*(i%NH),4)}, {v(vHL+hf)}, {s(SAR,4)}, {s(sKO+(ks>>1))} offen offset:{(ks&1)*1024} sc1']
            def red(hf):
                L = []
                for dt in range(2):
                    for q in range(4):
                        c = (8 * dt + 2 * q) * 16
                        if c: L.append([f'v_xor_b32 v20, {c}, {v(vRW)}', (f'ds_write_b128 v20, {v(AC2[hf][dt]+4*q,4)} offset:{hf*32768}', 'rw')])
                        else: L.append([(f'ds_write_b128 {v(vRW)}, {v(AC2[hf][dt]+4*q,4)} offset:{hf*32768}', 'rw')])
                L.append(f'v_xor_b32 v21, 16, {v(vRR)}')
                L.append([waitds('rw'), 's_barrier'])
                R = lambda w, e: AC2[0][w >> 1] + 8 * (w & 1) + e
                for w in range(4):
                    for e in range(2):
                        L.append(f'ds_read_b128 {v(R(w,4*e),4)}, {v(vRR) if e==0 else "v21"} offset:{hf*32768+w*8192}')
                if layer == 1: L += self.unpack_l(136, 88 + 4 * hf, 4)
                if hf == 0:
                    for w in (1, 2, 3):
                        for e in range(8): L.append(f'v_add_f32 {v(R(0,e))}, {v(R(0,e))}, {v(R(w,e))}')
                    if layer == 1:
                        for e in range(8): L.append(f'v_add_f32 {v(R(0,e))}, {v(R(0,e))}, {v(136+e)}')
                else:
                    if layer == 1:
                        for e in range(0, 8, 2): L.append(f'v_pk_add_f32 {v(R(0,e),2)}, {v(R(0,e),2)}, {v(136+e,2)}')
                    for w in (1, 2, 3):
                        for e in range(0, 8, 2): L.append(f'v_pk_add_f32 {v(R(0,e),2)}, {v(R(0,e),2)}, {v(R(w,e),2)}')
                for i in range(4): L.append(f'v_cvt_pk_bf16_f32 {v(R(1,i))}, {v(R(0,2*i))}, {v(R(0,2*i+1))}')
                L.append([f's_mov_b32 {s(sT)}, {hf*32768}',
                          f'buffer_store_dwordx4 {v(R(1,0),4)}, {v(vFO)}, {s(SAR if layer==0 else SO,4)}, {s(sT)} offen{SC if layer==0 else " sc1"}'])
                return L
            for i in range(NH): a.add(ld(i))
            if layer == 1:
                for hf in range(2):
                    a(f's_mov_b32 {s(sT)}, {hf*32768}')
                    a(f'buffer_load_dwordx4 {v(88+4*hf,4)}, {v(vFO)}, {s(SO,4)}, {s(sT)} offen sc1')
            for hf in range(2):
                main = []
                for ks in range(28):
                    i = 28 * hf + ks
                    for dt in range(2):
                        C = v(AC2[hf][dt], 16)
                        it = [f'v_mfma_f32_32x32x16_bf16 {C}, {self.w2reg(ks,dt)}, {v(HB+4*(i%NH),4)}, {"0" if ks==0 else C}']
                        if dt == 1 and i + NH < 56: it += ld(i + NH)
                        main.append(it)
                a.add(interleave(main, red(0), start=6, end=50) if hf else flat(main))
            self.st(f'g2mf{layer}')
            a.add(flat(red(1)))

        self.unpack(RY, RST + 8, 8)
        r_tail(0)
        self.st('R1')
        ffn_addrs()
        self.gsignal(3)
        self.st('ack3')
        self.stop(3)
        a('s_barrier')
        for ks in range(32):
            for u in range(2):
                a(f'ds_read_b64_tr_b16 {ac(4*ks+2*u,2)}, {v(19 if ks<16 else 23)} offset:{(ks&15)*4096+u*1024}')
        self.gpoll()
        a('s_waitcnt lgkmcnt(0)'); a('s_barrier')
        self.st('S3')
        g1(0)
        self.gsignal(4); self.stop(4)
        self.st('ack4')
        w2b_tr()
        self.gpoll()
        self.st('S4')
        g2(0)
        self.gsignal(5); self.stop(5)
        self.unpack(RX, RST, 8); self.unpack(RY, RST + 8, 8)
        self.gpoll()
        self.st('S5')
        for r in range(2): a(f'buffer_load_dwordx4 {v(80+4*r,4)}, {v(vRowA)}, {s(SAR,4)}, 0 offen offset:{1024*r} sc1')
        self.unpack(RN, 80, 8)
        for i in range(8): a(f'v_pk_add_f32 {v(RX+2*i,2)}, {v(RX+2*i,2)}, {v(RN+2*i,2)}')
        self.ln_stats(RX, RT); self.ln_apply(RN, RX)
        r_tail(1)
        self.st('R2')
        self.gsignal(6)
        self.stop(6)
        self.gpoll()
        self.st('S6')
        g1(1)
        self.gsignal(7); self.stop(7); self.gpoll()
        self.st('S7')
        if self.local and o.wbl2:
            L = a.lab('wb')
            a(f's_lshl_b32 {s(sT)}, {s(sJ)}, 2'); a(f's_add_u32 {s(sT)}, {s(sT)}, {s(sW)}'); a(f's_cmp_lg_u32 {s(sT)}, {o.wbl2}'); a(f's_cbranch_scc1 {L}')
            a.cond_begin(); a('buffer_wbl2 sc1'); a.cond_end()
            a(f'{L}:')
        g2(1)
        a('s_branch L_fin')

    def interleave_w(self, n, ntr):
        if ntr is not None: self.ntr = ntr
        out = []
        for _ in range(n):
            if self.wi >= 64: break
            while self.ntr < 16 and (2 * self.ntr + 1 + self.o.lag <= self.wi or self.wi >= 32 + 2 * self.ntr):
                out.append(self.w2a_tr(self.ntr)); self.ntr += 1
            out += self.D(1)
        return out

    def gen(self):
        a = self.a; o = self.o
        self.prologue()
        wi0 = self.wi
        if o.mode == 'auto':
            raise NotImplementedError
        else:
            self.local = (o.mode == 'local')
            self.body()
        a('L_cpf_end:')
        a('L_fin:')
        if o.diag:
            a('s_waitcnt vmcnt(0)')
            self.st('end')
            a('s_memrealtime s[74:75]')
            a('s_waitcnt lgkmcnt(0)')
            a('v_mov_b32 v20, 0')
            for n, i in self.stn.items(): a(f'v_writelane_b32 v20, {s(STAMPS[i])}, {i}')
            a('v_writelane_b32 v20, s78, 30'); a('v_writelane_b32 v20, s74, 31')
            a(f's_lshl_b32 {s(sT)}, s2, 2'); a(f's_add_u32 {s(sT)}, {s(sT)}, {s(sW)}'); a(f's_lshl_b32 {s(sT)}, {s(sT)}, 7'); a(f's_add_u32 {s(sT)}, {s(sT)}, {WS_DIAG}')
            a(f'v_lshlrev_b32 v21, 2, {v(vLane)}'); a('s_lshr_b64 exec, -1, 32')
            a(f'buffer_store_dword v20, v21, {s(SWS,4)}, {s(sT)} offen')
            if o.dbg >= 0:
                assert len(self.stn) <= 16
                a(f's_lshl_b32 {s(sT)}, s2, 2'); a(f's_add_u32 {s(sT)}, {s(sT)}, {s(sW)}'); a(f's_cmp_lg_u32 {s(sT)}, {o.dbg}'); a('s_cbranch_scc1 L_end')
                a(f'v_subrev_u32 v20, {s(STAMPS[0])}, v20'); a('s_sub_u32 s74, s74, s78'); a('v_writelane_b32 v20, s74, 0')
                self.srd(SO, 24, 64)
                a(f'buffer_store_dword v20, v21, {s(SO,4)}, 0 offen')
        a('L_end:')
        a('s_endpgm')
        body, st = finalize(a)
        hdr = open('cdna_kernels/' + NAME + '.s.ref').read().split('; Override launch')[0]
        txt = hdr + '; @launch grid=(256,1,1) block=(256,1,1) lds=163840\n'
        if o.diag: txt += '; stamps: ' + ' '.join(self.stn.keys()) + '\n'
        txt += f'''.amdgcn_target "amdgcn-amd-amdhsa--gfx950"
.text
.globl {NAME}_kernel
.p2align 8
.type {NAME}_kernel,@function
{NAME}_kernel:
{body}.section .rodata,"a"
.p2align 6
.amdhsa_kernel {NAME}_kernel
  .amdhsa_next_free_vgpr 512
  .amdhsa_next_free_sgpr 102
  .amdhsa_accum_offset 256
  .amdhsa_group_segment_fixed_size 0
  .amdhsa_kernarg_size 96
  .amdhsa_user_sgpr_count 2
  .amdhsa_user_sgpr_kernarg_segment_ptr 1
  .amdhsa_system_sgpr_workgroup_id_x 1
  .amdhsa_float_denorm_mode_32 3
.end_amdhsa_kernel
'''
        return txt, st

def parser():
    ap = argparse.ArgumentParser()
    ap.add_argument('-o', default='cdna_kernels/' + NAME + '.s')
    ap.add_argument('--diag', action='store_true'); ap.add_argument('--stop', type=int, default=0)
    ap.add_argument('--stamps', default='')
    ap.add_argument('--mode', default='global')
    for k, d in dict(cpf=3, apf=0, poison=0, d0=8, d1=8, d2=20, d3=8, d4=8, lag=10, nh1=4, xd0=8, wb0=52, wb1=124, hloc=0, wbl2=0, dbg=-1).items():
        ap.add_argument('--' + k, type=int, default=d)
    return ap

if __name__ == '__main__':
    o = parser().parse_args()
    txt, st = G(o).gen()
    open(o.o, 'w').write(txt)
    print(o.o, st)
```

```python
import sys, argparse
from asmlib import *

NAME = 'interleave_layers__ssm_conv_h3__dense_activation_silu__prompt'

def v(i, n=1): return f'v{i}' if n == 1 else f'v[{i}:{i+n-1}]'
def ac(i, n=1): return f'a{i}' if n == 1 else f'a[{i}:{i+n-1}]'
def s(i, n=1): return f's{i}' if n == 1 else f's[{i}:{i+n-1}]'
def flat(L):
    out = []
    for x in L:
        if isinstance(x, list): out.extend(flat(x))
        else: out.append(x)
    return out

WS_XF = 0x1000
WS_PF = 0x2000
WS_DIAG = 0x10000
WS_Y = 0x200000
WS_AR = 0x400000; AR_STRIDE = 0x200000
AR_A = 0x0; AR_HF = 0x40000; AR_FL = 0x120000
HF_TT = 114688
L_AUX = 131072
L_TB = L_AUX; L_U = L_AUX + 8192; U_PAR = 2368; U_CH = 4736; L_H = L_U + 9472; H_CH = 4160
L_P = L_AUX; L_YL = L_AUX
SK, SV, SQ, SH, SW1, SW2, SWS, SO, SAR = 28, 32, 36, 40, 44, 48, 52, 56, 60
sKO = 28
sX, sJ, sW, sMem, sGb, sNonce, sExp, sCnt = 64, 65, 66, 67, 68, 69, 70, 71
sT = 72
sCp = 76; sWo = 77; sWb = 3
sC4K = 80; sRow = 81; sLN = 82; sD0 = 86; sD1 = 87
STAMPS = [88, 90, 92, 94, 96, 98, 100, 4, 6, 8, 10, 12, 14, 16, 18, 20, 22, 24]
vLane, vMyF, vPollF, vRowA = 1, 3, 4, 7
vB, vGq = 17, 18
RST = 144
W2B = 160

class G:
    def __init__(self, opt):
        self.o = opt; self.a = Asm(); self.stn = {}; self.local = False
        self.want = set(opt.stamps.split(',')) if opt.stamps else None
    def stamp(self, name):
        if self.o.pad and name == self.o.padstamp: return ['s_memrealtime s[88:89]']
        if self.o.diag and (self.want is None or name in self.want or name in ('start', 'end')):
            if name not in self.stn:
                if len(self.stn) >= len(STAMPS) - 1 and name != 'end': return []
                self.stn[name] = len(self.stn)
            return [f's_memtime {s(STAMPS[self.stn[name]], 2)}']
        return []
    def st(self, name): self.a.add(self.stamp(name))
    def srd(self, d, base, size):
        a = self.a
        a(f's_mov_b32 {s(d)}, {s(base)}'); a(f's_and_b32 {s(d+1)}, {s(base+1)}, 0xffff')
        a(f's_mov_b32 {s(d+2)}, {size}'); a(f's_mov_b32 {s(d+3)}, 0x20000')
    @property
    def SC(self): return '' if self.local else ' sc1'

    def spin(self, load, check):
        a = self.a
        L = a.lab('poll'); Ld = a.lab('polld')
        a(f's_mov_b32 {s(sCnt)}, 0x8000')
        a(f'{L}:')
        a.add(load); a.add(check)
        a(f's_cbranch_scc1 {Ld}')
        a(f's_sub_u32 {s(sCnt)}, {s(sCnt)}, 1')
        a(f's_cbranch_scc0 {L}')
        a(f'{Ld}:')
    def flagcheck(self, r=2):
        return ['s_waitcnt vmcnt(0)', f'v_subrev_u32 {v(r)}, {s(sExp)}, {v(r)}', f'v_cmp_gt_u32 vcc, 16, {v(r)}', 's_cmp_eq_u64 vcc, exec']
    def gsignal(self, phase):
        a = self.a
        a(f's_add_u32 {s(sExp)}, {s(sNonce)}, {phase}'); a(f'v_mov_b32 v2, {s(sExp)}')
        a('s_waitcnt vmcnt(0) lgkmcnt(0)')
        a(f'buffer_store_dword v2, {v(vMyF)}, {s(SAR,4)}, 0 offen{self.SC}')
    def gpoll(self):
        self.spin([f'buffer_load_dword v2, {v(vPollF)}, {s(SAR,4)}, 0 offen sc1'], self.flagcheck())
    def stop(self, k):
        if self.o.stop == k: self.a('s_branch L_fin')

    def wstream_reset(self): self.wi = 0
    def D(self, n):
        out = []
        for _ in range(n):
            i = self.wi
            if i >= 88: break
            self.wi += 1
            g = []
            if i < 32:
                if i == 0: g += [f's_lshl_b32 {s(sWo)}, {s(sX)}, 15']
                else:
                    g += [f's_add_u32 {s(sWo)}, {s(sWo)}, 8192']
                    if i % 4 == 0: g += [f's_and_b32 {s(sWo)}, {s(sWo)}, 0x3ffff']
                g = [f's_add_u32 m0, {s(sWb)}, {i*1024}'] + g
                g += [(f'buffer_load_dwordx4 {v(self.vW2)}, {s(SW2,4)}, {s(sWo)} offen lds', f'w{i}')]
            elif i < 64:
                r = i - 32
                if r == 0: g += [f's_mul_i32 {s(sWo)}, {s(sX)}, {4*14336}']
                else:
                    g += [f's_add_u32 {s(sWo)}, {s(sWo)}, 14336']
                    if r % 4 == 0: g += [f's_cmp_eq_u32 {s(sWo)}, {32*14336}', f's_cselect_b32 {s(sWo)}, 0, {s(sWo)}']
                g = [f's_add_u32 m0, {s(sWb)}, {r*1024}'] + g
                if r % 2 == 0: g = [waitds(f't{r//2}')] + g
                g += [(f'buffer_load_dwordx4 {v(self.vW1)}, {s(SW1,4)}, {s(sWo)} offen lds', f'w{i}')]
            else:
                r = i - 64
                base = [L_AUX, 0, 32768][r // 8] + (r % 8) * 1024
                if r == 0: g += [f's_lshl_b32 {s(sWb)}, {s(sW)}, 13', f's_lshl_b32 {s(sWo)}, {s(sKO+8)}, 4']
                else:
                    g += [f's_add_u32 {s(sWo)}, {s(sWo)}, 8192']
                    if r % 4 == 0: g += [f's_cmp_eq_u32 {s(sWo)}, {56*8192}', f's_cselect_b32 {s(sWo)}, {32*8192}, {s(sWo)}']
                g += [f's_add_u32 m0, {s(sWb)}, {base}', 's_nop 0']
                g += [(f'buffer_load_dwordx4 {v(self.vW2)}, {s(SW2,4)}, {s(sWo)} offen lds', f'w{i}')]
            out.append(g)
        return out
    def w2reg(self, ks, dt, off=0, n=4):
        return ac(128 + ks * 8 + dt * 4 + off, n) if ks < 16 else v(W2B + (ks - 16) * 8 + dt * 4 + off, n)
    def w2a_tr(self, k):
        g = [waitvm(f'w{2*k+1}')]
        for dt in range(2):
            for u in range(2):
                g.append((f'ds_read_b64_tr_b16 {self.w2reg(k,dt,2*u,2)}, {v(self.vT2+dt)} offset:{k*2048+u*512}', f't{k}'))
        return g

    def ln_stats(self, X, T):
        a = self.a
        for r in range(2):
            x = X + 8 * r; t = T + 4 * r
            a(f'v_pk_add_f32 {v(t,2)}, {v(x,2)}, {v(x+2,2)}')
            a(f'v_pk_mul_f32 {v(t+2,2)}, {v(x,2)}, {v(x,2)}')
        for k in (1, 2, 3):
            for r in range(2):
                x = X + 8 * r; t = T + 4 * r
                if k > 1: a(f'v_pk_add_f32 {v(t,2)}, {v(t,2)}, {v(x+2*k,2)}')
                a(f'v_pk_fma_f32 {v(t+2,2)}, {v(x+2*k,2)}, {v(x+2*k,2)}, {v(t+2,2)}')
        for r in range(2):
            t = T + 4 * r
            a(f'v_add_f32 {v(t)}, {v(t)}, {v(t+1)}')
            a(f'v_add_f32 {v(t+2)}, {v(t+2)}, {v(t+3)}')
        a(f'v_permlane32_swap_b32 {v(T)}, {v(T+2)}')
        a(f'v_permlane32_swap_b32 {v(T+4)}, {v(T+6)}')
        a(f'v_add_f32 {v(T)}, {v(T)}, {v(T+2)}')
        a(f'v_add_f32 {v(T+4)}, {v(T+4)}, {v(T+6)}')
        a(f'v_permlane16_swap_b32 {v(T)}, {v(T+4)}')
        a(f'v_add_f32 {v(T)}, {v(T)}, {v(T+4)}')
        for ro in (8, 4, 2, 1):
            a(f'v_add_f32_dpp {v(T)}, {v(T)}, {v(T)} row_ror:{ro} row_mask:0xf bank_mask:0xf')
        a(f'v_mul_f32 {v(T)}, 0x3b000000, {v(T)}')
        a(f'v_mov_b32 {v(T+1)}, {v(T)}')
        a(f'v_permlane32_swap_b32 {v(T)}, {v(T+1)}')
        a(f'v_fma_f32 {v(T+1)}, -{v(T)}, {v(T)}, {v(T+1)}')
        a(f'v_max_f32 {v(T+1)}, 0, {v(T+1)}')
        a(f'v_add_f32 {v(T+1)}, 0x3727c5ac, {v(T+1)}')
        a(f'v_rsq_f32 {v(T+1)}, {v(T+1)}')
        a(f'v_mul_f32 {v(T)}, -{v(T)}, {v(T+1)}')
        a(f'v_readlane_b32 {s(sLN)}, {v(T+1)}, 0')
        a(f'v_readlane_b32 {s(sLN+2)}, {v(T+1)}, 16')
        a(f'v_readlane_b32 {s(sLN+1)}, {v(T)}, 0')
        a(f'v_readlane_b32 {s(sLN+3)}, {v(T)}, 16')
    def ln_apply(self, D, X):
        for r in range(2):
            for k in range(4):
                i = 8 * r + 2 * k
                self.a(f'v_pk_fma_f32 {v(D+i,2)}, {v(X+i,2)}, {s(sLN+2*r,2)}, {s(sLN+2*r,2)} op_sel:[0,0,1] op_sel_hi:[1,0,1]')
    def unpack_l(self, D, S, n):
        L = []
        for i in range(n):
            L += [f'v_lshlrev_b32 {v(D+2*i)}, 16, {v(S+i)}', f'v_and_b32 {v(D+2*i+1)}, 0xffff0000, {v(S+i)}']
        return L
    def unpack(self, D, S, n): self.a.add(self.unpack_l(D, S, n))
    def pack(self, D, S, n):
        for i in range(n):
            self.a(f'v_cvt_pk_bf16_f32 {v(D+i)}, {v(S+2*i)}, {v(S+2*i+1)}')

    def prologue(self):
        a = self.a; o = self.o
        a('s_cmp_ge_u32 s2, 0x100'); a('s_cbranch_scc1 L_end')
        if o.diag or o.pad: a('s_memrealtime s[78:79]')
        self.st('start')
        a('s_load_dwordx16 s[4:19], s[0:1], 0'); a('s_load_dwordx8 s[20:27], s[0:1], 64')
        if o.cpf:
            a(f's_getpc_b64 {s(SH,2)}'); a(f's_and_b32 {s(SH)}, {s(SH)}, 0xffffff00'); a(f's_and_b32 {s(SH+1)}, {s(SH+1)}, 0xffff')
            a(f's_mov_b32 {s(SH+2)}, L_cpf_end-{NAME}_kernel'); a(f's_mov_b32 {s(SH+3)}, 0x20000')
            a(f's_lshr_b32 {s(sT)}, s2, 3'); a(f's_lshl_b32 {s(sT)}, {s(sT)}, {7+o.cpf}')
            a('v_lshlrev_b32 v2, 7, v0'); a(f'v_cmp_gt_u32 vcc, {1<<o.cpf}, v0'); a('v_cndmask_b32 v2, -1, v2, vcc')
            a(f'buffer_load_dword v23, v2, {s(SH,4)}, {s(sT)} offen')
        a(f'v_lshrrev_b32 v2, 6, v0'); a(f'v_and_b32 {v(vLane)}, 63, v0')
        a(f'v_readfirstlane_b32 {s(sW)}, v2')
        a(f's_and_b32 {s(sX)}, s2, 7'); a(f's_lshr_b32 {s(sJ)}, s2, 3')
        a(f's_and_b32 {s(sMem)}, {s(sJ)}, 15'); a(f's_lshr_b32 {s(sGb)}, {s(sJ)}, 4')
        a(f's_movk_i32 {s(sC4K)}, 0x1000')
        a(f's_lshl_b32 {s(sCp)}, {s(sX)}, 5'); a(f's_add_u32 {s(sCp)}, {s(sCp)}, {s(sJ)}')
        vTA = 8; vH0 = 9
        a('v_and_b32 v12, 31, v0'); a('v_lshrrev_b32 v13, 5, v0')
        a(f's_lshl_b32 {s(sT)}, {s(sJ)}, 16'); a(f's_lshl_b32 {s(sT+1)}, {s(sX)}, 7'); a(f's_add_u32 {s(sT)}, {s(sT)}, {s(sT+1)}')
        a(f'v_lshlrev_b32 {v(vTA)}, 13, v13'); a(f'v_lshl_add_u32 {v(vTA)}, v12, 2, {v(vTA)}'); a(f'v_add_u32 {v(vTA)}, {s(sT)}, {v(vTA)}')
        for e in range(3): a(f'v_subrev_u32 {v(vH0+e)}, {(3-e)*1024}, {v(vTA)}')
        a(f's_lshl_b32 {s(sT+1)}, {s(sX)}, 9'); a(f'v_lshl_add_u32 v14, v12, 4, {s(sT+1)}')
        a(f'v_and_b32 {v(vB)}, 15, {v(vLane)}'); a(f'v_lshrrev_b32 {v(vGq)}, 4, {v(vLane)}')
        a('v_lshlrev_b32 v5, 4, v0')
        a(f's_and_b32 {s(sT)}, {s(sMem)}, 3'); a(f's_lshl_b32 {s(sRow)}, {s(sT)}, 5')
        a(f's_lshr_b32 {s(sT)}, {s(sW)}, 1'); a(f's_lshl_b32 {s(sT)}, {s(sT)}, 4'); a(f's_add_u32 {s(sRow)}, {s(sRow)}, {s(sT)}')
        a(f's_and_b32 {s(sT)}, {s(sMem)}, 12'); a(f's_add_u32 {s(sRow)}, {s(sRow)}, {s(sT)}')
        a(f's_and_b32 {s(sT)}, {s(sW)}, 1'); a(f's_lshl_b32 {s(sT)}, {s(sT)}, 1'); a(f's_add_u32 {s(sRow)}, {s(sRow)}, {s(sT)}')
        a(f's_lshl_b32 {s(sT)}, {s(sGb)}, 7'); a(f's_add_u32 {s(sRow)}, {s(sRow)}, {s(sT)}')
        a(f's_lshl_b32 {s(sT)}, {s(sRow)}, 10'); a(f'v_lshl_add_u32 {v(vRowA)}, {v(vLane)}, 4, {s(sT)}')
        self.vW2 = 15; self.vW1 = 16
        a(f'v_lshrrev_b32 v20, 3, {v(vLane)}'); a(f'v_and_b32 v21, 1, {v(vGq)}'); a('v_lshlrev_b32 v21, 2, v21')
        a(f'v_and_b32 v15, 7, {v(vLane)}'); a('v_xor_b32 v15, v15, v21'); a('v_lshlrev_b32 v15, 4, v15'); a('v_lshl_add_u32 v15, v20, 10, v15')
        a(f's_mul_i32 {s(sT)}, {s(sW)}, {448*1024}'); a(f's_and_b32 {s(sT+1)}, {s(sMem)}, 7'); a(f's_lshl_b32 {s(sT+1)}, {s(sT+1)}, 7')
        a(f's_add_u32 {s(sT)}, {s(sT)}, {s(sT+1)}'); a(f'v_add_u32 v15, {s(sT)}, v15')
        a(f's_lshl_b32 {s(sWb)}, {s(sW)}, 15')
        a('s_waitcnt lgkmcnt(0)')
        self.st('karg')
        a(f's_load_dword {s(sNonce)}, s[26:27], 0')
        self.srd(SK, 6, 0x200000); self.srd(SV, 8, 0x200000)
        KR, VR, WR = 24, 35, 44
        for e in range(3): a(f'buffer_load_dword {v(KR+e)}, {v(vH0+e)}, {s(SK,4)}, 0 offen')
        for e in range(8): a(f'buffer_load_dword {v(KR+3+e)}, {v(vTA)}, {s(SK,4)}, {s(sC4K) if e>=4 else 0} offen offset:{(e&3)*1024}')
        a(f'global_load_dwordx4 {v(WR,4)}, v14, s[10:11]')
        for e in range(8): a(f'buffer_load_dword {v(VR+e)}, {v(vTA)}, {s(SV,4)}, {s(sC4K) if e>=4 else 0} offen offset:{(e&3)*1024}')
        a(f's_lshl_b32 {s(sT)}, {s(sCp)}, 2'); a(f's_load_dword {s(sD1)}, s[14:15], {s(sT)}')
        self.srd(SH, 12, 0x200000)
        a(f's_lshl_b32 {s(sT)}, {s(sCp)}, 13'); a(f's_add_u32 {s(sT+1)}, {s(sT)}, 4096'); a(f's_lshl_b32 {s(sT+2)}, {s(sW)}, 10')
        for c in range(2):
            a(f's_add_u32 m0, {s(sT+2)}, {L_H+32+c*H_CH}'); a('s_nop 0')
            a(f'buffer_load_dwordx4 v5, {s(SH,4)}, {s(sT+c)} offen lds', tag='h')
        self.srd(SWS, 26, 0x10000000)
        a(f's_lshl_b32 {s(sT)}, {s(sX)}, 21'); a(f's_add_u32 {s(sT)}, {s(sT)}, {WS_AR}')
        a(f's_add_u32 {s(SAR)}, s26, {s(sT)}'); a(f's_addc_u32 {s(SAR+1)}, s27, 0'); a(f's_and_b32 {s(SAR+1)}, {s(SAR+1)}, 0xffff')
        a(f's_mov_b32 {s(SAR+2)}, {AR_STRIDE}'); a(f's_mov_b32 {s(SAR+3)}, 0x20000')
        if o.apf:
            a(f's_lshl_b32 {s(sT)}, {s(sJ)}, 13'); a(f's_lshl_b32 {s(sT+1)}, {s(sW)}, 11'); a(f's_add_u32 {s(sT)}, {s(sT)}, {s(sT+1)}')
            a(f'v_lshl_add_u32 v20, {v(vB)}, 7, {s(sT)}')
            a(f'v_lshlrev_b32 v21, 7, {v(vB)}'); a(f'v_add_u32 v21, {AR_FL+0x2000-0x200}, v21')
            a(f'v_cmp_gt_u32 vcc, 16, {v(vLane)}'); a('v_cndmask_b32 v20, v21, v20, vcc')
            a('s_mov_b64 exec, 0xffffff')
            a(f'buffer_load_dword v22, v20, {s(SAR,4)}, 0 offen sc1')
            a('s_mov_b64 exec, -1')
        if o.poison:
            a('v_mov_b32 v104, -1'); a('v_mov_b32 v105, -1'); a('v_mov_b32 v106, -1'); a('v_mov_b32 v107, -1')
            a(f's_lshl_b32 {s(sT)}, {s(sCp)}, 13'); a(f's_add_u32 {s(sT)}, {s(sT)}, {WS_Y}'); a(f's_add_u32 {s(sT+1)}, {s(sT)}, 4096')
            for c in range(2): a(f'buffer_store_dwordx4 v[104:107], v5, {s(SWS,4)}, {s(sT+c)} offen sc1')
        self.srd(SQ, 4, 0x200000)
        a(f's_lshl_b32 {s(sT)}, {s(sX)}, 18')
        for r in range(2): a(f'buffer_load_dwordx4 {v(112+4*r,4)}, {v(vRowA)}, {s(SQ,4)}, {s(sT)} offen offset:{1024*r}')
        self.srd(SW2, 20, 0x1c0000)
        self.wstream_reset()
        a.add(flat(self.D(o.d0)))
        self.srd(SW1, 18, 0x1c0000)
        a(f's_cmp_ge_u32 {s(sMem)}, 14'); a(f's_cselect_b32 {s(SW1+2)}, 0, {s(SW1+2)}')
        a(f's_lshl_b32 {s(sT)}, {s(sX)}, 18'); a(f's_add_u32 {s(SO)}, s22, {s(sT)}'); a(f's_addc_u32 {s(SO+1)}, s23, 0'); a(f's_and_b32 {s(SO+1)}, {s(SO+1)}, 0xffff')
        a(f's_mov_b32 {s(SO+2)}, 0x40000'); a(f's_mov_b32 {s(SO+3)}, 0x20000')
        a(f'v_lshlrev_b32 v16, 2, {v(vGq)}'); a(f'v_xor_b32 v16, v16, {v(vB)}'); a('v_lshlrev_b32 v16, 4, v16')
        a(f's_movk_i32 {s(sT)}, 3584'); a(f'v_mad_u32_u24 v16, {v(vGq)}, {s(sT)}, v16')
        a(f's_mul_i32 {s(sT)}, {s(sW)}, {128*3584}'); a(f's_lshl_b32 {s(sT+1)}, {s(sMem)}, 8'); a(f's_add_u32 {s(sT)}, {s(sT)}, {s(sT+1)}')
        a(f'v_add_u32 v16, {s(sT)}, v16')
        a(f's_mul_i32 {s(sT)}, {s(sW)}, {U_PAR}'); a(f's_add_u32 {s(sT)}, {s(sT)}, {L_U}')
        a(f'v_lshl_add_u32 v19, {v(vLane)}, 2, {s(sT)}'); a('v_mov_b32 v20, 0')
        a(f's_lshr_b32 {s(sT)}, {s(sW)}, 1'); a(f's_mul_i32 {s(sT)}, {s(sT)}, {H_CH}'); a(f's_and_b32 {s(sT+1)}, {s(sW)}, 1'); a(f's_lshl_b32 {s(sT+1)}, {s(sT+1)}, 4')
        a(f's_add_u32 {s(sT)}, {s(sT)}, {s(sT+1)}'); a(f's_add_u32 {s(sT)}, {s(sT)}, {L_H-240}')
        a(f'v_lshl_add_u32 v21, {v(vLane)}, 2, {s(sT)}'); a(f'v_cmp_gt_u32 vcc, 60, {v(vLane)}'); a('v_cndmask_b32 v19, v21, v19, vcc')
        a('ds_write_b32 v19, v20')
        for p in range(8):
            a(f's_add_u32 {s(sT)}, {s(sX)}, {p}'); a(f's_and_b32 {s(sT)}, {s(sT)}, 7'); a(f's_lshl_b32 {s(sKO+p)}, {s(sT)}, 11')
        a(f's_sub_u32 {s(sT)}, {s(sX)}, 6'); a(f's_cselect_b32 {s(sT)}, {s(sX)}, {s(sT)}')
        for p in range(6):
            a(f's_add_u32 {s(sT+1)}, {s(sT)}, 8'); a(f's_lshl_b32 {s(sKO+8+p)}, {s(sT+1)}, 11')
            if p < 5:
                a(f's_add_u32 {s(sT)}, {s(sT)}, 1'); a(f's_cmp_eq_u32 {s(sT)}, 6'); a(f's_cselect_b32 {s(sT)}, 0, {s(sT)}')
        a(f's_mul_i32 {s(sNonce)}, {s(sNonce)}, 0x9e3779b1'); a(f's_add_u32 {s(sNonce)}, {s(sNonce)}, 0x7f4a7c15')
        a(f's_and_b32 {s(sNonce)}, {s(sNonce)}, 0xfffffff0')
        a(f's_lshl_b32 {s(sD0)}, {s(sD1)}, 16'); a(f's_and_b32 {s(sD1)}, {s(sD1)}, 0xffff0000')
        if o.mode == 'auto':
            a(f's_getreg_b32 {s(sT)}, hwreg(HW_REG_XCC_ID, 0, 4)'); a(f's_or_b32 {s(sExp)}, {s(sNonce)}, {s(sT)}')
            a(f's_lshl_b32 {s(sT)}, {s(sCp)}, 2'); a(f's_add_u32 {s(sT)}, {s(sT)}, {WS_XF}')
            a(f'v_mov_b32 v20, {s(sExp)}'); a(f'v_cmp_eq_u32 vcc, 0, v0'); a(f'v_mov_b32 v21, {s(sT)}'); a('v_cndmask_b32 v21, -1, v21, vcc')
            a(f'buffer_store_dword v20, v21, {s(SWS,4)}, 0 offen sc1')
        self.st('issued')
        WP, KP, VP, SS = 48, 56, 78, 94
        L = self.unpack_l(KP, KR, 11)
        L += self.stamp('kv')
        for j in range(4):
            for c in range(2):
                src = WR + 2 * c + (j >> 1)
                L.append(f'v_lshlrev_b32 {v(WP+2*j+c)}, 16, {v(src)}' if j % 2 == 0 else f'v_and_b32 {v(WP+2*j+c)}, 0xffff0000, {v(src)}')
        for t in range(8): L.append(f'v_pk_mul_f32 {v(SS+2*t,2)}, {v(WP,2)}, {v(KP+2*(t+3),2)}')
        for j in (1, 2, 3):
            for t in range(8): L.append(f'v_pk_fma_f32 {v(SS+2*t,2)}, {v(WP+2*j,2)}, {v(KP+2*(t+3-j),2)}, {v(SS+2*t,2)}')
        L += self.unpack_l(VP, VR, 8)
        if o.mode == 'auto':
            L += [f's_lshl_b32 {s(sT)}, {s(sX)}, 7', f's_add_u32 {s(sT)}, {s(sT)}, {WS_XF}', f's_add_u32 {s(sT+1)}, {s(sT)}, 64']
        for t in range(8): L.append(f'v_pk_mul_f32 {v(SS+2*t,2)}, {v(SS+2*t,2)}, {v(VP+2*t,2)}')
        for c in range(2):
            for jj in range(4): L.append(f'v_cvt_pk_bf16_f32 {v(24+4*c+jj)}, {v(SS+2*(7-2*jj)+c)}, {v(SS+2*(6-2*jj)+c)}')
        a('v_and_b32 v19, 7, v12'); a('v_xor_b32 v19, v19, v13'); a('v_lshlrev_b32 v19, 4, v19'); a('v_lshl_add_u32 v19, v12, 8, v19')
        a(f'v_add_u32 v19, {L_TB}, v19')
        a('v_lshrrev_b32 v20, 3, v0'); a('v_and_b32 v21, 7, v0')
        a('v_bfe_u32 v6, v0, 4, 3'); a('v_xor_b32 v6, v6, v21'); a('v_lshlrev_b32 v6, 4, v6'); a('v_lshl_add_u32 v6, v20, 7, v6')
        a(f'v_add_u32 v6, {L_TB}, v6')
        a(f's_lshl_b32 {s(sT)}, {s(sJ)}, 7')
        a('v_lshlrev_b32 v20, 12, v20'); a('v_lshl_add_u32 v20, v21, 4, v20'); a(f'v_add_u32 v20, {s(sT)}, v20')
        a(f's_and_b32 {s(sT)}, {s(sW)}, 1'); a(f's_lshl_b32 {s(sT)}, {s(sT)}, 7'); a(f's_add_u32 {s(sT)}, {s(sT)}, 1')
        a(f'v_lshl_add_u32 v8, {v(vGq)}, 5, {v(vB)}'); a(f'v_add_u32 v8, {s(sT)}, v8')
        a('v_and_b32 v9, 1, v8'); a('v_lshlrev_b32 v9, 4, v9'); a('v_and_b32 v8, -2, v8')
        a(f's_lshr_b32 {s(sT)}, {s(sW)}, 1'); a(f's_mul_i32 {s(sT)}, {s(sT)}, {H_CH}'); a(f's_add_u32 {s(sT)}, {s(sT)}, {L_H}')
        a(f'v_lshl_add_u32 v8, v8, 1, {s(sT)}')
        a.add(L)
        a('ds_write_b128 v19, v[24:27]'); a('ds_write_b128 v19, v[28:31] offset:128')
        a.wait_vm('h')
        a('s_waitcnt lgkmcnt(0)'); a('s_barrier')
        a('ds_read_b128 v[32:35], v6'); a('ds_read_b128 v[36:39], v6 offset:4096')

    def body(self):
        a = self.a; o = self.o; SC = self.SC
        AF = 128; XF = 120
        a(f's_mov_b32 {s(sT)}, {32*4096}')
        a(f'buffer_store_dwordx4 v[32:35], v20, {s(SAR,4)}, 0 offen{SC}')
        a(f'buffer_store_dwordx4 v[36:39], v20, {s(SAR,4)}, {s(sT)} offen{SC}')
        self.st('T')
        def hrd(i):
            L = []
            if i and i % 2 == 0: L.append('v_add_u32 v8, 1024, v8')
            b = (i & 1) * 128
            for k in range(0, 16, 2): L.append(f'ds_read2_b32 {v(AF+16*i+k,2)}, v8 offset0:{b+k} offset1:{b+k+1}')
            L.append(f'ds_read_b32 {v(XF+i)}, v8 offset:{(b+16)*4}')
            return L
        def hal(i):
            return [f'v_alignbit_b32 {v(AF+16*i+k)}, {v(AF+16*i+k+1 if k<15 else XF+i)}, {v(AF+16*i+k)}, v9' for k in range(16)]
        fs1 = 2 if self.local else 7
        F1 = AR_FL + 0x2000 - 0x200 if self.local else AR_FL
        a(f's_lshl_b32 {s(sT)}, {s(sJ)}, {fs1}'); a(f's_add_u32 {s(sT)}, {s(sT)}, {F1}')
        a(f'v_mov_b32 v21, {s(sT)}'); a('v_cmp_eq_u32 vcc, 0, v0'); a(f's_mov_b32 {s(sT)}, {F1}'); a(f'v_lshl_add_u32 v22, v12, {fs1}, {s(sT)}')
        a('v_cndmask_b32 v21, -1, v21, vcc')
        a(f's_lshl_b32 {s(sT)}, {s(sCp)}, 4'); a(f's_add_u32 {s(sT)}, {s(sT)}, {WS_PF}'); a(f'v_mov_b32 v23, {s(sT)}'); a('v_cndmask_b32 v23, -1, v23, vcc')
        nh1 = o.nh1
        for i in range(nh1):
            a.add(hrd(i))
            if i: a.add(hal(i - 1))
        a(f's_add_u32 {s(sExp)}, {s(sNonce)}, 1'); a(f'v_mov_b32 v2, {s(sExp)}')
        a('s_waitcnt vmcnt(0)'); a('s_barrier')
        self.st('ack1')
        a(f'buffer_store_dword v2, v21, {s(SAR,4)}, 0 offen{SC}')
        if o.poison: a(f'buffer_store_dword v2, v23, {s(SWS,4)}, 0 offen sc1')
        self.stop(1)
        for i in range(nh1, 8):
            a.add(hrd(i))
            if i: a.add(hal(i - 1))
        a.add(hal(7))
        self.vT2 = 9; vBB = 11; vUD = 12
        a(f'v_bfe_u32 v20, {v(vLane)}, 2, 2'); a(f'v_lshrrev_b32 v21, 5, {v(vLane)}'); a('v_lshl_add_u32 v21, v21, 3, v20')
        a(f'v_lshl_add_u32 v9, v21, 7, {s(sWb)}')
        a(f'v_and_b32 v6, 1, {v(vGq)}'); a('v_lshl_add_u32 v9, v6, 5, v9')
        a(f'v_and_b32 v6, 3, {v(vLane)}'); a('v_lshl_add_u32 v9, v6, 3, v9')
        a('v_lshrrev_b32 v6, 1, v20'); a('v_lshl_add_u32 v9, v6, 6, v9')
        a('v_xor_b32 v10, 64, v9')
        a('v_and_b32 v21, 1, v0'); a(f'v_mul_u32_u24 v21, {U_PAR}, v21'); a('v_lshrrev_b32 v6, 1, v0'); a('v_lshl_add_u32 v21, v6, 4, v21')
        a(f'v_add_u32 v21, {L_U+240}, v21')
        a(f's_lshr_b32 {s(sT)}, {s(sW)}, 1'); a(f's_mul_i32 {s(sT)}, {s(sT)}, {U_CH}'); a(f's_and_b32 {s(sT+1)}, {s(sW)}, 1'); a(f's_lshl_b32 {s(sT+1)}, {s(sT+1)}, 7')
        a(f's_sub_u32 {s(sT)}, {s(sT)}, {s(sT+1)}'); a(f's_add_u32 {s(sT)}, {s(sT)}, {L_U+14*16}')
        a(f'v_lshlrev_b32 v6, 1, {v(vGq)}'); a(f'v_sub_u32 v6, {v(vB)}, v6'); a(f'v_lshl_add_u32 {v(vBB)}, v6, 4, {s(sT)}')
        a(f's_lshl_b32 {s(sT)}, {s(sW)}, 9'); a(f's_add_u32 {s(sT)}, {s(sT)}, {L_U+240+8}')
        a(f'v_lshl_add_u32 {v(vUD)}, {v(vB)}, 4, {s(sT)}')
        a(f'v_lshrrev_b32 v6, 1, {v(vGq)}'); a(f'v_mul_u32_u24 v6, {U_PAR}, v6'); a(f'v_add_u32 {v(vUD)}, {v(vUD)}, v6')
        a(f'v_and_b32 v6, 1, {v(vGq)}'); a('v_lshlrev_b32 v6, 3, v6'); a(f'v_sub_u32 {v(vUD)}, {v(vUD)}, v6')
        a(f's_lshl_b32 {s(sT)}, {s(sJ)}, 13'); a(f's_add_u32 {s(sT+1)}, {s(sT)}, 4096')
        self.st('hdone')
        self.spin([f'buffer_load_dword v2, v22, {s(SAR,4)}, 0 offen sc1'], self.flagcheck())
        self.st('S1')
        a(f'buffer_load_dwordx4 v[88:91], v5, {s(SAR,4)}, {s(sT)} offen sc1')
        a(f'buffer_load_dwordx4 v[92:95], v5, {s(SAR,4)}, {s(sT+1)} offen sc1')
        ntr = o.d0 // 2
        a.add(flat(self.D(o.d1)))
        for k in range(ntr): a.add(self.w2a_tr(k))
        a('ds_write_b128 v21, v[88:91]'); a(f'ds_write_b128 v21, v[92:95] offset:{U_CH}')
        a('s_waitcnt lgkmcnt(0)'); a('s_barrier')
        self.st('Uld')
        ACC, BR, UD, UF = 24, 56, 96, 104
        def bread(m, r):
            par = (31 - r) & 1; add = ((31 - r) >> 1) - 14
            return (f'ds_read_b128 {v(BR+4*m,4)}, {v(vBB)} offset:{par*U_PAR+(16*m+add)*16}', 'br')
        for m in range(8): a.add([bread(m, 0)])
        for n2 in range(2):
            for c in range(2): a(f'ds_read_b64 {v(UD+4*n2+2*c,2)}, {v(vUD)} offset:{c*U_CH+n2*256}')
        main = []
        for r in range(4):
            for m in range(8):
                for i in range(8 - m):
                    C = v(ACC + 4 * (i + m), 4)
                    it = [f'v_mfma_f32_16x16x32_bf16 {C}, {v(AF+16*i+4*r,4)}, {v(BR+4*m,4)}, {"0" if (r==0 and m==0) else C}']
                    if i == 7 - m and r < 3: it.append(bread(m, r + 1))
                    if r == 3 and m == 1 and i == 0: it += [waitds('br'), 's_barrier']
                    main.append(it)
        fill = []
        for g in self.interleave_w(o.d2, ntr): fill.append(g)
        ex = []
        for n2 in range(2):
            for c in range(2):
                b = 88 + 0
        if o.poison:
            main[100] = main[100] + [f's_mov_b32 {s(sT)}, {WS_PF}', f'buffer_load_dword v19, v5, {s(SWS,4)}, {s(sT)} offen sc1']
        a.add(interleave(main, fill, start=0, end=140))
        self.st('convmf')
        a(f's_lshl_b32 {s(sT)}, {s(sW)}, 13'); a(f's_add_u32 {s(sT)}, {s(sT)}, {L_P}'); a(f'v_lshl_add_u32 v20, {v(vLane)}, 4, {s(sT)}')
        a(f's_lshl_b32 {s(sT)}, {s(sW)}, 11'); a(f's_add_u32 {s(sT)}, {s(sT)}, {L_P}'); a(f'v_lshl_add_u32 v21, {v(vLane)}, 4, {s(sT)}')
        for N in range(8): a(f'ds_write_b128 v20, {v(ACC+4*N,4)} offset:{N*1024}')
        UF = 128
        for n2 in range(2):
            for c in range(2):
                b = UF + 8 * n2 + 4 * c; sr = UD + 4 * n2 + 2 * c
                a(f'v_and_b32 {v(b+0)}, 0xffff0000, {v(sr+1)}'); a(f'v_lshlrev_b32 {v(b+1)}, 16, {v(sr+1)}')
                a(f'v_and_b32 {v(b+2)}, 0xffff0000, {v(sr)}'); a(f'v_lshlrev_b32 {v(b+3)}, 16, {v(sr)}')
        a(f's_lshl_b32 {s(sT)}, {s(sCp)}, 13'); a(f's_lshl_b32 {s(sT+1)}, {s(sW)}, 11'); a(f's_add_u32 {s(sT)}, {s(sT)}, {s(sT+1)}'); a(f's_add_u32 {s(sT)}, {s(sT)}, {WS_Y}')
        a(f'v_lshlrev_b32 v22, 4, {v(vLane)}')
        if o.poison:
            Lok = a.lab('pfok')
            a(f'v_subrev_u32 v19, {s(sExp)}, v19'); a('v_cmp_gt_u32 vcc, 16, v19'); a('s_cmp_eq_u64 vcc, exec'); a(f's_cbranch_scc1 {Lok}')
            a.cond_begin()
            a(f's_mov_b32 {s(sT+1)}, {WS_PF}')
            self.spin([f'buffer_load_dword v2, v5, {s(SWS,4)}, {s(sT+1)} offen sc1'], self.flagcheck())
            a.cond_end()
            a(f'{Lok}:')
        a('s_waitcnt lgkmcnt(0)'); a('s_barrier')
        for n2 in range(2):
            for w in range(4): a(f'ds_read_b128 {v(BR+16*n2+4*w,4)}, v21 offset:{w*8192+n2*1024}')
        for n2 in range(2):
            for c in range(2):
                p = BR + 16 * n2 + 8 * c; b = UF + 8 * n2 + 4 * c
                for r in range(4): a(f'v_fma_f32 {v(b+r)}, {v(b+r)}, {s(sD0+c)}, {v(p+r)}')
                for r in range(0, 4, 2): a(f'v_pk_add_f32 {v(b+r,2)}, {v(b+r,2)}, {v(p+4+r,2)}')
            for r in range(4): a(f'v_cvt_pk_bf16_f32 {v(88+4*n2+r)}, {v(UF+8*n2+r)}, {v(UF+8*n2+4+r)}')
            if o.poison:
                for r in range(4): a(f'v_min_u32 {v(88+4*n2+r)}, -2, {v(88+4*n2+r)}')
            a(f'buffer_store_dwordx4 {v(88+4*n2,4)}, v22, {s(SWS,4)}, {s(sT)} offen offset:{n2*1024} sc1')
        self.st('conv')
        a.add(flat(self.interleave_w(o.d3, None)))
        RX, RN, RY, RT = 24, 40, 56, 72
        self.unpack(RX, 112, 8)
        self.ln_stats(RX, RT)
        self.ln_apply(RN, RX)
        a(f's_lshl_b32 {s(sT)}, {s(sX)}, 10'); a(f's_and_b32 {s(sT+1)}, {s(sMem)}, 12'); a(f's_lshl_b32 {s(sT+1)}, {s(sT+1)}, 6'); a(f's_add_u32 {s(sT)}, {s(sT)}, {s(sT+1)}')
        a(f's_lshl_b32 {s(sT+1)}, {s(sGb)}, 7'); a(f's_add_u32 {s(sT)}, {s(sT)}, {s(sT+1)}')
        a(f's_and_b32 {s(sT+1)}, {s(sMem)}, 3'); a(f's_lshl_b32 {s(sT+1)}, {s(sT+1)}, 5'); a(f's_add_u32 {s(sT)}, {s(sT)}, {s(sT+1)}')
        a(f's_add_u32 {s(sT+2)}, {s(sT)}, {WS_Y}'); a(f's_add_u32 {s(sT+3)}, {s(sT+2)}, {128*8192}')
        a('v_lshrrev_b32 v20, 1, v0'); a('v_and_b32 v21, 1, v0')
        a('v_lshlrev_b32 v22, 13, v20'); a('v_lshl_add_u32 v22, v21, 4, v22')
        a('v_lshlrev_b32 v21, 12, v21'); a('v_lshl_add_u32 v21, v20, 2, v21'); a(f'v_add_u32 v21, {L_YL}, v21')
        a(f's_lshl_b32 {s(sT)}, {s(sW)}, 11'); a(f's_add_u32 {s(sT)}, {s(sT)}, {L_YL}'); a(f'v_lshl_add_u32 v20, {v(vLane)}, 4, {s(sT)}')
        gl = [f'buffer_load_dwordx4 v[88:91], v22, {s(SWS,4)}, {s(sT+2)} offen sc1', f'buffer_load_dwordx4 v[92:95], v22, {s(SWS,4)}, {s(sT+3)} offen sc1']
        if not o.poison:
            a(f's_add_u32 {s(sExp)}, {s(sNonce)}, 2'); a(f'v_mov_b32 v2, {s(sExp)}')
            a('s_waitcnt vmcnt(0)'); a('s_barrier')
            a(f'buffer_store_dword v2, v23, {s(SWS,4)}, 0 offen sc1')
            self.stop(2)
            a(f's_mov_b32 {s(sT+1)}, {WS_PF}')
            self.spin([f'buffer_load_dword v2, v5, {s(SWS,4)}, {s(sT+1)} offen sc1'], self.flagcheck())
            a('s_barrier')
            self.st('S2')
            a.add(gl)
        else:
            a('s_barrier')
            self.st('S2')
            chk = ['s_waitcnt vmcnt(0)', 'v_max3_u32 v2, v88, v89, v90', 'v_max3_u32 v6, v91, v92, v93', 'v_max3_u32 v2, v2, v94, v95', 'v_max_u32 v2, v2, v6',
                   'v_cmp_ne_u32 vcc, -1, v2', 's_cmp_eq_u64 vcc, exec']
            self.spin(gl, chk)
        a.add(flat(self.interleave_w(o.d4, None)))
        for e in range(2):
            for k in range(4): a(f'ds_write_b32 v21, {v(88+4*e+k)} offset:{k*1024+e*512}')
        a('s_waitcnt lgkmcnt(0)'); a('s_barrier')
        a(f'ds_read_b128 {v(RST+8,4)}, v20'); a(f'ds_read_b128 {v(RST+12,4)}, v20 offset:1024')
        self.st('Yld')
        a.add(flat(self.interleave_w(64 - self.wi, None)))

        vXD = 8; XA = 96; vHS = 6; vHL = 13; vRW = 11; vRR = 12; vFO = 5
        def ffn_addrs():
            fs = 2 if self.local else 6
            a(f's_lshl_b32 {s(sT)}, {s(sGb)}, {6+fs}'); a(f's_add_u32 {s(sT)}, {s(sT)}, {AR_FL+0x2000}')
            a(f'v_lshl_add_u32 {v(vPollF)}, {v(vLane)}, {fs}, {s(sT)}')
            a(f's_lshl_b32 {s(sT+1)}, {s(sMem)}, 2'); a(f's_add_u32 {s(sT+1)}, {s(sT+1)}, {s(sW)}')
            a(f'v_cmp_eq_u32 vcc, {s(sT+1)}, {v(vLane)}'); a(f'v_cndmask_b32 {v(vMyF)}, -1, {v(vPollF)}, vcc')
            a(f's_lshl_b32 {s(sT)}, {s(sW)}, 2'); a(f'v_add_u32 v20, {s(sT)}, {v(vGq)}')
            a(f'v_xor_b32 v21, v20, {v(vB)}'); a('v_lshlrev_b32 v21, 4, v21'); a(f'v_lshl_add_u32 {v(vXD)}, v20, 10, v21')
            a(f's_lshl_b32 {s(sT)}, {s(sGb)}, 17'); a(f'v_add_u32 {v(vXD)}, {s(sT)}, {v(vXD)}')
            a(f'v_and_b32 v20, 31, {v(vLane)}'); a(f'v_lshrrev_b32 v21, 5, {v(vLane)}')
            a(f'v_xor_b32 v22, v21, {v(vB)}'); a('v_lshlrev_b32 v22, 4, v22'); a(f'v_lshl_add_u32 v22, v20, 8, v22')
            for e in range(8):
                a(f's_lshr_b32 {s(sT)}, {s(sKO+e)}, 6'); a(f'v_xor_b32 {v(XA+e)}, {s(sT)}, v22')
            a(f's_mul_i32 {s(sT+2)}, {s(sGb)}, {4*HF_TT}'); a(f's_add_u32 {s(sT+2)}, {s(sT+2)}, {AR_HF}')
            a(f's_lshl_b32 {s(sT)}, {s(sMem)}, 13'); a(f's_lshl_b32 {s(sT+1)}, {s(sW)}, 11'); a(f's_add_u32 {s(sT)}, {s(sT)}, {s(sT+1)}'); a(f's_add_u32 {s(sT)}, {s(sT)}, {s(sT+2)}')
            a(f'v_lshl_add_u32 {v(vHS)}, {v(vLane)}, 4, {s(sT)}')
            a(f's_lshr_b32 {s(sT)}, {s(sMem)}, 3'); a(f's_mul_i32 {s(sT)}, {s(sT)}, {2*HF_TT}'); a(f's_mul_i32 {s(sT+1)}, {s(sW)}, 28672'); a(f's_add_u32 {s(sT)}, {s(sT)}, {s(sT+1)}')
            a(f's_add_u32 {s(sT)}, {s(sT)}, {s(sT+2)}')
            a(f'v_lshl_add_u32 {v(vHL)}, {v(vLane)}, 4, {s(sT)}'); a(f'v_add_u32 {v(vHL+1)}, {HF_TT}, {v(vHL)}')
            a(f'v_and_b32 v22, 7, {v(vLane)}'); a('v_xor_b32 v22, v22, v21'); a('v_lshlrev_b32 v22, 4, v22'); a('v_lshl_add_u32 v22, v20, 8, v22')
            a(f's_lshl_b32 {s(sT)}, {s(sW)}, 13'); a(f's_add_u32 {s(sT)}, {s(sT)}, 65536'); a(f'v_add_u32 {v(vRW)}, {s(sT)}, v22')
            a('v_lshrrev_b32 v20, 3, v0'); a('v_and_b32 v21, 7, v0'); a('v_and_b32 v22, 7, v20'); a('v_lshlrev_b32 v23, 1, v21'); a('v_xor_b32 v22, v22, v23')
            a('v_lshlrev_b32 v22, 4, v22'); a(f'v_lshl_add_u32 {v(vRR)}, v20, 8, v22'); a(f'v_add_u32 {v(vRR)}, 65536, {v(vRR)}')
            a(f's_lshr_b32 {s(sT)}, {s(sJ)}, 3'); a(f's_lshl_b32 {s(sT)}, {s(sT)}, 16'); a(f's_and_b32 {s(sT+1)}, {s(sMem)}, 7'); a(f's_lshl_b32 {s(sT+1)}, {s(sT+1)}, 7')
            a(f's_add_u32 {s(sT)}, {s(sT)}, {s(sT+1)}'); a('v_lshlrev_b32 v20, 10, v20'); a('v_lshl_add_u32 v20, v21, 4, v20'); a(f'v_add_u32 {v(vFO)}, {s(sT)}, v20')
            a(f'v_bfe_u32 v20, {v(vLane)}, 2, 2'); a(f'v_lshrrev_b32 v21, 5, {v(vLane)}'); a('v_lshl_add_u32 v21, v21, 3, v20')
            a(f'v_xor_b32 v22, {s(sW)}, v20'); a('v_lshlrev_b32 v22, 6, v22'); a('v_lshl_add_u32 v19, v21, 8, v22')
            a(f'v_and_b32 v22, 1, {v(vGq)}'); a('v_lshl_add_u32 v19, v22, 5, v19')
            a(f'v_and_b32 v22, 1, {v(vLane)}'); a('v_lshl_add_u32 v19, v22, 4, v19')
            a(f'v_bfe_u32 v22, {v(vLane)}, 1, 1'); a('v_lshl_add_u32 v19, v22, 3, v19')
            a('v_add_u32 v23, 0x10000, v19')
            a(f's_mul_i32 {s(sT)}, {s(sW)}, {32768-8192}'); a(f'v_subrev_u32 v9, {s(sT)}, v9'); a(f'v_subrev_u32 v10, {s(sT)}, v10')

        def r_tail(layer):
            for i in range(8): a(f'v_pk_fma_f32 {v(RX+2*i,2)}, {v(RN+2*i,2)}, {v(RY+2*i,2)}, {v(RX+2*i,2)}')
            self.ln_stats(RX, RT)
            self.ln_apply(RN, RX)
            self.pack(80, RN, 8)
            for r in range(2): a(f'buffer_store_dwordx4 {v(80+4*r,4)}, {v(vRowA)}, {s(SAR,4)}, 0 offen offset:{1024*r}{SC}')
            self.pack(RST, RX, 8)

        order = [0, 2, 1, 3]
        XB = 56; NB = 6; ET = 80; PK = 88
        def epi(sl, layer):
            A0 = 24 + 16 * (sl & 1); L = []
            hs = ' sc1' if (layer == 0 and not o.hloc) else SC
            for q in range(4):
                t = ET + 4 * (q & 1)
                for e in range(4): L.append(f'v_mul_f32 {v(t+e)}, 0xbfb8aa3b, {v(A0+4*q+e)}')
                for e in range(4): L.append(f'v_exp_f32 {v(t+e)}, {v(t+e)}')
                for e in range(4): L.append(f'v_add_f32 {v(t+e)}, 1.0, {v(t+e)}')
                for e in range(4): L.append(f'v_rcp_f32 {v(t+e)}, {v(t+e)}')
                for e in range(4): L.append(f'v_mul_f32 {v(t+e)}, {v(t+e)}, {v(A0+4*q+e)}')
                for e in range(2): L.append(f'v_cvt_pk_bf16_f32 {v(PK+2*q+e)}, {v(t+2*e)}, {v(t+2*e+1)}')
                if q & 1:
                    st = []
                    if q == 1: st.append(f's_mov_b32 {s(sT+3)}, {order[sl]*HF_TT}')
                    st.append(f'buffer_store_dwordx4 {v(PK+4*(q>>1),4)}, {v(vHS)}, {s(SAR,4)}, {s(sT+3)} offen offset:{(q>>1)*1024}{hs}')
                    L.append(st)
            return L
        wt = lambda f: 2 if isinstance(f, str) and f.startswith(TRANS) else 1

        def g1(layer):
            Lskip = a.lab('g1skip'); Ldone = a.lab('g1done')
            a(f's_cmp_ge_u32 {s(sMem)}, 14'); a(f's_cbranch_scc1 {Lskip}')
            a(f's_lshl_b32 {s(sT+2)}, {s(sW)}, 10')
            a.add([forget('x')])
            xd = []
            for sl, tt in enumerate(order):
                for kq in range(4):
                    for b in range(2):
                        g = [f's_add_u32 m0, {s(sT+2)}, {sl*32768+kq*8192+b*4096-kq*256}']
                        g.append(f's_mov_b32 {s(sT+b)}, {tt*32768+b*16384}' if kq == 0 else 's_nop 0')
                        g.append((f'buffer_load_dwordx4 {v(vXD)}, {s(SAR,4)}, {s(sT+b)} offen offset:{kq*256} sc1 lds', f'x{sl}_{kq}'))
                        xd.append(g)
            bar = {(0, 0): 'x0_0', (0, 1): 'x0_1', (0, 2): 'x0_3', (1, 0): 'x1_1', (1, 2): 'x1_3', (2, 0): 'x3_3'}
            def rd(i):
                sl, ks = divmod(i, 32)
                pre = []
                if ks % 8 == 0 and (sl, ks // 8) in bar: pre = [waitvm(bar[(sl, ks // 8)]), 's_barrier']
                if sl == 2 and ks < 8: pre.append(f'v_xor_b32 {v(XA+ks)}, 0x10000, {v(XA+ks)}')
                return pre + [f'ds_read_b128 {v(XB+4*(i%NB),4)}, {v(XA+(ks&7))} offset:{(sl&1)*32768+(ks>>3)*8192}']
            n0 = o.xd0
            a.add(flat(xd[:n0])); xi = n0
            for i in range(NB - 1): a.add(rd(i))
            self.st(f'g1go{layer}')
            allm = []
            for i in range(128):
                sl, ks = divmod(i, 32); C = v(24 + 16 * (sl & 1), 16)
                it = []
                if i + NB - 1 < 128: it += rd(i + NB - 1)
                it.append(f'v_mfma_f32_32x32x16_bf16 {C}, {ac(4*ks,4)}, {v(XB+4*(i%NB),4)}, {"0" if ks==0 else C}')
                if xi < 32 and i % 2 == 0: it += xd[xi]; xi += 1
                allm.append(it)
            if layer == 0:
                w = self.D(24)
                pos = [o.wb0 + (k * (o.wb1 - o.wb0)) // 24 for k in range(24)]
                assert pos[8] >= 44 and pos[16] >= 76
                allm[75] = allm[75] + ['s_barrier']
                for k in range(24): allm[pos[k]] = allm[pos[k]] + w[k]
            x3st = [f'buffer_store_dwordx4 {v(RST+4*r,4)}, {v(vRowA)}, {s(SO,4)}, 0 offen offset:{1024*r} sc1' for r in range(2)]
            ep = [f'v_mov_b32 v20, {s(sNonce)}', 'v_or_b32 v21, s2, v0', 'v_cmp_eq_u32 vcc, 0, v21', 'v_cndmask_b32 v21, -1, v21, vcc',
                  f'buffer_store_dword v20, v21, {s(SWS,4)}, 0 offen sc1']
            if layer == 1:
                allm[62] = allm[62] + x3st[:1]; allm[63] = allm[63] + x3st[1:]
                allm[0] = allm[0] + ep[:3]; allm[1] = allm[1] + ep[3:4]; allm[64] = allm[64] + ep[4:]
            for sl in range(4):
                main = allm[32 * sl:32 * sl + 32]
                a.add(interleave(main, epi(sl - 1, layer), start=3, end=31, weight=wt) if sl else flat(main))
            self.st(f'g1mf{layer}')
            for e in range(8): a(f'v_xor_b32 {v(XA+e)}, 0x10000, {v(XA+e)}')
            a.add(flat(epi(3, layer)))
            a(f's_branch {Ldone}')
            a(f'{Lskip}:')
            if layer == 0:
                self.wi = 64
                a.add(flat(self.D(24)))
            else:
                a.add(x3st)
            a(f'{Ldone}:')

        def w2b_tr():
            a(f'v_add_u32 v20, {L_AUX}, v9'); a(f'v_add_u32 v21, {L_AUX}, v10')
            for k in range(12):
                for dt in range(2):
                    for u in range(2):
                        ad = 20 + dt if k < 4 else 9 + dt
                        off = (k & 3) * 2048 + u * 512 + (32768 if k >= 8 else 0)
                        a(f'ds_read_b64_tr_b16 {self.w2reg(16+k,dt,2*u,2)}, {v(ad)} offset:{off}')

        def g2(layer):
            HB = 104; NH = 8; AC2 = [[24, 56], [40, 72]]
            def ld(i):
                hf, ks = divmod(i, 28)
                return [f'buffer_load_dwordx4 {v(HB+4*(i%NH),4)}, {v(vHL+hf)}, {s(SAR,4)}, {s(sKO+(ks>>1))} offen offset:{(ks&1)*1024} sc1']
            def red(hf):
                L = []
                for dt in range(2):
                    for q in range(4):
                        c = (8 * dt + 2 * q) * 16
                        if c: L.append([f'v_xor_b32 v20, {c}, {v(vRW)}', (f'ds_write_b128 v20, {v(AC2[hf][dt]+4*q,4)} offset:{hf*32768}', 'rw')])
                        else: L.append([(f'ds_write_b128 {v(vRW)}, {v(AC2[hf][dt]+4*q,4)} offset:{hf*32768}', 'rw')])
                L.append(f'v_xor_b32 v21, 16, {v(vRR)}')
                L.append([waitds('rw'), 's_barrier'])
                R = lambda w, e: AC2[0][w >> 1] + 8 * (w & 1) + e
                for w in range(4):
                    for e in range(2):
                        L.append(f'ds_read_b128 {v(R(w,4*e),4)}, {v(vRR) if e==0 else "v21"} offset:{hf*32768+w*8192}')
                if layer == 1: L += self.unpack_l(136, 88 + 4 * hf, 4)
                if hf == 0:
                    for w in (1, 2, 3):
                        for e in range(8): L.append(f'v_add_f32 {v(R(0,e))}, {v(R(0,e))}, {v(R(w,e))}')
                    if layer == 1:
                        for e in range(8): L.append(f'v_add_f32 {v(R(0,e))}, {v(R(0,e))}, {v(136+e)}')
                else:
                    if layer == 1:
                        for e in range(0, 8, 2): L.append(f'v_pk_add_f32 {v(R(0,e),2)}, {v(R(0,e),2)}, {v(136+e,2)}')
                    for w in (1, 2, 3):
                        for e in range(0, 8, 2): L.append(f'v_pk_add_f32 {v(R(0,e),2)}, {v(R(0,e),2)}, {v(R(w,e),2)}')
                for i in range(4): L.append(f'v_cvt_pk_bf16_f32 {v(R(1,i))}, {v(R(0,2*i))}, {v(R(0,2*i+1))}')
                L.append([f's_mov_b32 {s(sT)}, {hf*32768}',
                          f'buffer_store_dwordx4 {v(R(1,0),4)}, {v(vFO)}, {s(SAR if layer==0 else SO,4)}, {s(sT)} offen{SC if layer==0 else " sc1"}'])
                return L
            for i in range(NH): a.add(ld(i))
            if layer == 1:
                for hf in range(2):
                    a(f's_mov_b32 {s(sT)}, {hf*32768}')
                    a(f'buffer_load_dwordx4 {v(88+4*hf,4)}, {v(vFO)}, {s(SO,4)}, {s(sT)} offen sc1')
            for hf in range(2):
                main = []
                for ks in range(28):
                    i = 28 * hf + ks
                    for dt in range(2):
                        C = v(AC2[hf][dt], 16)
                        it = [f'v_mfma_f32_32x32x16_bf16 {C}, {self.w2reg(ks,dt)}, {v(HB+4*(i%NH),4)}, {"0" if ks==0 else C}']
                        if dt == 1 and i + NH < 56: it += ld(i + NH)
                        main.append(it)
                a.add(interleave(main, red(0), start=6, end=50) if hf else flat(main))
            self.st(f'g2mf{layer}')
            a.add(flat(red(1)))

        self.unpack(RY, RST + 8, 8)
        r_tail(0)
        self.st('R1')
        ffn_addrs()
        self.gsignal(3)
        self.st('ack3')
        self.stop(3)
        a('s_barrier')
        for ks in range(32):
            for u in range(2):
                a(f'ds_read_b64_tr_b16 {ac(4*ks+2*u,2)}, {v(19 if ks<16 else 23)} offset:{(ks&15)*4096+u*1024}')
        self.gpoll()
        a('s_waitcnt lgkmcnt(0)'); a('s_barrier')
        self.st('S3')
        g1(0)
        self.gsignal(4); self.stop(4)
        self.st('ack4')
        w2b_tr()
        self.gpoll()
        self.st('S4')
        g2(0)
        self.gsignal(5); self.stop(5)
        self.unpack(RX, RST, 8); self.unpack(RY, RST + 8, 8)
        self.gpoll()
        self.st('S5')
        for r in range(2): a(f'buffer_load_dwordx4 {v(80+4*r,4)}, {v(vRowA)}, {s(SAR,4)}, 0 offen offset:{1024*r} sc1')
        self.unpack(RN, 80, 8)
        for i in range(8): a(f'v_pk_add_f32 {v(RX+2*i,2)}, {v(RX+2*i,2)}, {v(RN+2*i,2)}')
        self.ln_stats(RX, RT); self.ln_apply(RN, RX)
        r_tail(1)
        self.st('R2')
        self.gsignal(6)
        self.stop(6)
        self.gpoll()
        self.st('S6')
        g1(1)
        self.gsignal(7); self.stop(7); self.gpoll()
        self.st('S7')
        if self.local and o.wbl2:
            L = a.lab('wb')
            a(f's_lshl_b32 {s(sT)}, {s(sJ)}, 2'); a(f's_add_u32 {s(sT)}, {s(sT)}, {s(sW)}'); a(f's_cmp_lg_u32 {s(sT)}, {o.wbl2}'); a(f's_cbranch_scc1 {L}')
            a.cond_begin(); a('buffer_wbl2 sc1'); a.cond_end()
            a(f'{L}:')
        g2(1)
        a('s_branch L_fin')

    def interleave_w(self, n, ntr):
        if ntr is not None: self.ntr = ntr
        out = []
        for _ in range(n):
            if self.wi >= 64: break
            while self.ntr < 16 and (2 * self.ntr + 1 + self.o.lag <= self.wi or self.wi >= 32 + 2 * self.ntr):
                out.append(self.w2a_tr(self.ntr)); self.ntr += 1
            out += self.D(1)
        return out

    def gen(self):
        a = self.a; o = self.o
        self.prologue()
        wi0 = self.wi
        if o.mode == 'auto':
            raise NotImplementedError
        else:
            self.local = (o.mode == 'local')
            self.body()
        a('L_cpf_end:')
        a('L_fin:')
        if o.pad:
            a('s_waitcnt vmcnt(0)')
            self.st('end')
            a('s_waitcnt lgkmcnt(0)')
            a(f's_add_u32 s72, {"s88" if o.padstamp else "s78"}, {o.pad*100}')
            a('L_padl:'); a('s_memrealtime s[74:75]'); a('s_waitcnt lgkmcnt(0)'); a('s_sub_u32 s74, s74, s72'); a('s_cmp_lt_i32 s74, 0'); a('s_cbranch_scc1 L_padl')
        if o.diag:
            a('s_waitcnt vmcnt(0)')
            self.st('end')
            a('s_memrealtime s[74:75]')
            a('s_waitcnt lgkmcnt(0)')
            a('v_mov_b32 v20, 0')
            for n, i in self.stn.items(): a(f'v_writelane_b32 v20, {s(STAMPS[i])}, {i}')
            a('v_writelane_b32 v20, s78, 30'); a('v_writelane_b32 v20, s74, 31')
            a(f's_lshl_b32 {s(sT)}, s2, 2'); a(f's_add_u32 {s(sT)}, {s(sT)}, {s(sW)}'); a(f's_lshl_b32 {s(sT)}, {s(sT)}, 7'); a(f's_add_u32 {s(sT)}, {s(sT)}, {WS_DIAG}')
            a(f'v_lshlrev_b32 v21, 2, {v(vLane)}'); a('s_lshr_b64 exec, -1, 32')
            a(f'buffer_store_dword v20, v21, {s(SWS,4)}, {s(sT)} offen')
            if o.dbg >= 0:
                assert len(self.stn) <= 16
                a(f's_lshl_b32 {s(sT)}, s2, 2'); a(f's_add_u32 {s(sT)}, {s(sT)}, {s(sW)}'); a(f's_cmp_lg_u32 {s(sT)}, {o.dbg}'); a('s_cbranch_scc1 L_end')
                a(f'v_subrev_u32 v20, {s(STAMPS[0])}, v20'); a('s_sub_u32 s74, s74, s78'); a('v_writelane_b32 v20, s74, 0')
                self.srd(SO, 24, 64)
                a(f'buffer_store_dword v20, v21, {s(SO,4)}, 0 offen')
        a('L_end:')
        a('s_endpgm')
        body, st = finalize(a)
        hdr = open('cdna_kernels/' + NAME + '.s.ref').read().split('; Override launch')[0]
        txt = hdr + '; @launch grid=(256,1,1) block=(256,1,1) lds=163840\n'
        if o.diag: txt += '; stamps: ' + ' '.join(self.stn.keys()) + '\n'
        txt += f'''.amdgcn_target "amdgcn-amd-amdhsa--gfx950"
.text
.globl {NAME}_kernel
.p2align 8
.type {NAME}_kernel,@function
{NAME}_kernel:
{body}.section .rodata,"a"
.p2align 6
.amdhsa_kernel {NAME}_kernel
  .amdhsa_next_free_vgpr 512
  .amdhsa_next_free_sgpr 102
  .amdhsa_accum_offset 256
  .amdhsa_group_segment_fixed_size 0
  .amdhsa_kernarg_size 96
  .amdhsa_user_sgpr_count 2
  .amdhsa_user_sgpr_kernarg_segment_ptr 1
  .amdhsa_system_sgpr_workgroup_id_x 1
  .amdhsa_float_denorm_mode_32 3
.end_amdhsa_kernel
'''
        return txt, st

def parser():
    ap = argparse.ArgumentParser()
    ap.add_argument('-o', default='cdna_kernels/' + NAME + '.s')
    ap.add_argument('--diag', action='store_true'); ap.add_argument('--stop', type=int, default=0)
    ap.add_argument('--stamps', default='')
    ap.add_argument('--mode', default='global'); ap.add_argument('--padstamp', default='')
    for k, d in dict(cpf=3, apf=0, poison=0, d0=8, d1=8, d2=20, d3=8, d4=8, lag=10, nh1=4, xd0=8, wb0=52, wb1=124, hloc=0, wbl2=0, dbg=-1, pad=0).items():
        ap.add_argument('--' + k, type=int, default=d)
    return ap

if __name__ == '__main__':
    o = parser().parse_args()
    txt, st = G(o).gen()
    open(o.o, 'w').write(txt)
    print(o.o, st)
```

```python
import sys, argparse
from asmlib import *

NAME = 'interleave_layers__ssm_conv_h3__dense_activation_silu__prompt'

def v(i, n=1): return f'v{i}' if n == 1 else f'v[{i}:{i+n-1}]'
def ac(i, n=1): return f'a{i}' if n == 1 else f'a[{i}:{i+n-1}]'
def s(i, n=1): return f's{i}' if n == 1 else f's[{i}:{i+n-1}]'
def flat(L):
    out = []
    for x in L:
        if isinstance(x, list): out.extend(flat(x))
        else: out.append(x)
    return out

WS_XF = 0x1000
WS_PF = 0x2000
WS_DIAG = 0x10000
WS_Y = 0x200000
WS_AR = 0x400000; AR_STRIDE = 0x200000
AR_A = 0x0; AR_HF = 0x40000
AR_F1 = 0x120000
AR_FG = AR_F1 + 0x200
AR_ST = AR_F1 + 0x400
HF_TT = 114688
L_AUX = 131072
L_TB = L_AUX; L_U = L_AUX + 8192; U_PAR = 2368; U_CH = 4736; L_H = L_U + 9472; H_CH = 4160
L_P = L_AUX; L_YL = L_AUX
SK, SV, SQ, SH, SW1, SW2, SWS, SO, SAR = 28, 32, 36, 40, 44, 48, 52, 56, 60
sKO = 28
sL2E = 42; sW1K = 43
sX, sJ, sW, sMem, sGb, sNonce, sExp, sCnt = 64, 65, 66, 67, 68, 69, 70, 71
sT = 72
sCp = 76; sWo = 77; sWb = 3
sC4K = 80; sRow = 81; sLN = 82; sD0 = 86; sD1 = 87
STAMPS = [88, 90, 92, 94, 96, 98, 100, 16, 24, 4, 6, 8, 10, 12, 14, 18, 20, 22]
vLane, vMyF, vPollF, vT16, vRowA = 1, 3, 4, 5, 7
vT2, vW2, vW1, vB, vGq = 9, 15, 16, 17, 18
vTBr, vHA, vBB, vUD, vUW, vPFm, vTBw, vUst, vSh, vPw, vPr = 6, 8, 11, 12, 13, 14, 19, 20, 21, 110, 111
QR = 112; XF = 120; AF = 128
vFO, vHS, vXD, vRW, vRR, vHL, vT1, XA = 5, 6, 8, 11, 12, 13, 110, 96
RST = 144
W2B = 160
RX, RN, RY, RT = 24, 40, 56, 72

class G:
    def __init__(self, opt):
        self.o = opt; self.a = Asm(); self.stn = {}; self.local = False
        self.want = set(opt.stamps.split(',')) if opt.stamps else None
        self.segs = []; self.nlab = 0
    def lab(self, b):
        self.nlab += 1; return f'L_{b}_{self.nlab}'
    def stamp(self, name):
        if self.o.pad and name == self.o.padstamp: return ['s_memrealtime s[88:89]']
        if self.o.diag and (self.want is None or name in self.want or name in ('start', 'end')):
            if name not in self.stn:
                if len(self.stn) >= len(STAMPS) - 1 and name != 'end': return []
                self.stn[name] = len(self.stn)
            return [f'{"s_memrealtime" if self.o.rt else "s_memtime"} {s(STAMPS[self.stn[name]], 2)}']
        return []
    def st(self, name): self.a.add(self.stamp(name))
    def srd(self, d, base, size):
        a = self.a
        a(f's_mov_b32 {s(d)}, {s(base)}'); a(f's_and_b32 {s(d+1)}, {s(base+1)}, 0xffff')
        a(f's_mov_b32 {s(d+2)}, {size}'); a(f's_mov_b32 {s(d+3)}, 0x20000')
    @property
    def SC(self): return '' if self.local else ' sc1'
    def ool(self, items):
        x = Asm(); x.add(items); self.segs.append(x)

    def retry(self, load, test):
        Ls = self.lab('slow'); Lr = self.lab('ret'); Ll = self.lab('spin')
        self.ool([f'{Ls}:', f's_mov_b32 {s(sCnt)}, 0x8000', f'{Ll}:'] + load + ['s_waitcnt vmcnt(0)'] + test +
                 [f's_cbranch_vccz {Lr}', f's_sub_u32 {s(sCnt)}, {s(sCnt)}, 1', f's_cbranch_scc0 {Ll}', f's_branch {Lr}'])
        return test + [f's_cbranch_vccnz {Ls}', f'{Lr}:']
    def ftest(self, r): return [f'v_subrev_u32 {v(r)}, {s(sExp)}, {v(r)}', f'v_cmp_le_u32 vcc, 16, {v(r)}']
    def gsig(self, phase, wait):
        return [f's_add_u32 {s(sExp)}, {s(sNonce)}, {phase}', f'v_mov_b32 v2, {s(sExp)}'] + wait + \
               [f'buffer_store_dword v2, {v(vMyF)}, {s(SAR,4)}, 0 offen{self.SC}']
    def gload(self): return [f'buffer_load_dword v2, {v(vPollF)}, {s(SAR,4)}, 0 offen sc1']
    def gcheck(self): return self.retry(self.gload(), self.ftest(2))
    def stop(self, k):
        if self.o.stop == k: self.a('s_branch L_fin')

    def D(self, n):
        out = []
        for _ in range(n):
            i = self.wi
            if i >= 88: break
            self.wi += 1
            g = []
            if i < 32:
                if i == 0: g += [f's_lshl_b32 {s(sWo)}, {s(sX)}, 15']
                else:
                    g += [f's_add_u32 {s(sWo)}, {s(sWo)}, 8192']
                    if i % 4 == 0: g += [f's_and_b32 {s(sWo)}, {s(sWo)}, 0x3ffff']
                g = [f's_add_u32 m0, {s(sWb)}, {i*1024}'] + g
                g += [(f'buffer_load_dwordx4 {v(vW2)}, {s(SW2,4)}, {s(sWo)} offen lds', f'w{i}')]
            elif i < 64:
                r = i - 32
                if r == 0: g += [f's_mul_i32 {s(sWo)}, {s(sX)}, {4*14336}']
                else:
                    g += [f's_add_u32 {s(sWo)}, {s(sWo)}, 14336']
                    if r % 4 == 0: g += [f's_cmp_eq_u32 {s(sWo)}, {32*14336}', f's_cselect_b32 {s(sWo)}, 0, {s(sWo)}']
                g = [f's_add_u32 m0, {s(sWb)}, {r*1024}'] + g
                if r % 2 == 0: g = [waitds(f't{r//2}')] + g
                g += [(f'buffer_load_dwordx4 {v(vW1)}, {s(SW1,4)}, {s(sWo)} offen lds', f'w{i}')]
            else:
                r = i - 64
                base = [L_AUX, 0, 32768][r // 8] + (r % 8) * 1024
                if r == 0: g += [f's_lshl_b32 {s(sWb)}, {s(sW)}, 13', f's_add_u32 m0, {s(sWb)}, {base}', f's_lshl_b32 {s(sWo)}, {s(sKO+8)}, 4']
                else:
                    g += [f's_add_u32 m0, {s(sWb)}, {base}', f's_add_u32 {s(sWo)}, {s(sWo)}, 8192']
                    if r % 4 == 0: g += [f's_cmp_eq_u32 {s(sWo)}, {56*8192}', f's_cselect_b32 {s(sWo)}, {32*8192}, {s(sWo)}']
                g += [(f'buffer_load_dwordx4 {v(vW2)}, {s(SW2,4)}, {s(sWo)} offen lds', f'w{i}')]
            out.append(g)
        return out
    def w2reg(self, ks, dt, off=0, n=4):
        return ac(128 + ks * 8 + dt * 4 + off, n) if ks < 16 else v(W2B + (ks - 16) * 8 + dt * 4 + off, n)
    def w2a_tr(self, k):
        g = []
        for dt in range(2):
            h = [waitvm(f'w{2*k+1}')] if dt == 0 else []
            for u in range(2):
                h.append((f'ds_read_b64_tr_b16 {self.w2reg(k,dt,2*u,2)}, {v(vT2+dt)} offset:{k*2048+u*512}', f't{k}'))
            g.append(h)
        return g
    def W(self, n, lag=None):
        lag = self.o.lag if lag is None else lag
        out = []
        for _ in range(n):
            if self.wi >= 64: break
            while self.ntr < 16 and (2 * self.ntr + 1 + lag <= self.wi or self.wi >= 32 + 2 * self.ntr):
                out += self.w2a_tr(self.ntr); self.ntr += 1
            out += self.D(1)
        return out
    def Wtr(self):
        out = []
        while self.ntr < 16 and 2 * self.ntr + 1 < self.wi:
            out += self.w2a_tr(self.ntr); self.ntr += 1
        return out

    def ln_stats(self, X, T):
        a = self.a
        for r in range(2):
            x = X + 8 * r; t = T + 4 * r
            a(f'v_pk_add_f32 {v(t,2)}, {v(x,2)}, {v(x+2,2)}')
            a(f'v_pk_mul_f32 {v(t+2,2)}, {v(x,2)}, {v(x,2)}')
        for k in (1, 2, 3):
            for r in range(2):
                x = X + 8 * r; t = T + 4 * r
                if k > 1: a(f'v_pk_add_f32 {v(t,2)}, {v(t,2)}, {v(x+2*k,2)}')
                a(f'v_pk_fma_f32 {v(t+2,2)}, {v(x+2*k,2)}, {v(x+2*k,2)}, {v(t+2,2)}')
        for r in range(2):
            t = T + 4 * r
            a(f'v_add_f32 {v(t)}, {v(t)}, {v(t+1)}')
            a(f'v_add_f32 {v(t+2)}, {v(t+2)}, {v(t+3)}')
        a(f'v_permlane32_swap_b32 {v(T)}, {v(T+2)}')
        a(f'v_permlane32_swap_b32 {v(T+4)}, {v(T+6)}')
        a(f'v_add_f32 {v(T)}, {v(T)}, {v(T+2)}')
        a(f'v_add_f32 {v(T+4)}, {v(T+4)}, {v(T+6)}')
        a(f'v_permlane16_swap_b32 {v(T)}, {v(T+4)}')
        a(f'v_add_f32 {v(T)}, {v(T)}, {v(T+4)}')
        for ro in (8, 4, 2, 1):
            a(f'v_add_f32_dpp {v(T)}, {v(T)}, {v(T)} row_ror:{ro} row_mask:0xf bank_mask:0xf')
        a(f'v_mul_f32 {v(T+1)}, 0x3b000000, {v(T)}')
        a(f'v_mul_f32 {v(T)}, 0x3b000000, {v(T)}')
        a(f'v_permlane32_swap_b32 {v(T)}, {v(T+1)}')
        a(f'v_fma_f32 {v(T+1)}, -{v(T)}, {v(T)}, {v(T+1)}')
        a(f'v_max_f32 {v(T+1)}, 0, {v(T+1)}')
        a(f'v_add_f32 {v(T+1)}, 0x3727c5ac, {v(T+1)}')
        a(f'v_rsq_f32 {v(T+2)}, {v(T+1)}')
        a(f'v_mul_f32 {v(T+3)}, -{v(T)}, {v(T+2)}')
        a(f'v_readlane_b32 {s(sLN)}, {v(T+2)}, 0')
        a(f'v_readlane_b32 {s(sLN+2)}, {v(T+2)}, 16')
        a(f'v_readlane_b32 {s(sLN+1)}, {v(T+3)}, 0')
        a(f'v_readlane_b32 {s(sLN+3)}, {v(T+3)}, 16')
    def ln_apply_l(self, D, X, r):
        return [f'v_pk_fma_f32 {v(D+8*r+2*k,2)}, {v(X+8*r+2*k,2)}, {s(sLN+2*r,2)}, {s(sLN+2*r,2)} op_sel:[0,0,1] op_sel_hi:[1,0,1]' for k in range(4)]
    def ln_apply(self, D, X):
        for r in range(2): self.a.add(self.ln_apply_l(D, X, r))
    def unpack_l(self, D, S, n):
        L = []
        for i in range(n):
            L += [f'v_lshlrev_b32 {v(D+2*i)}, 16, {v(S+i)}', f'v_and_b32 {v(D+2*i+1)}, 0xffff0000, {v(S+i)}']
        return L
    def unpack(self, D, S, n): self.a.add(self.unpack_l(D, S, n))
    def pack_l(self, D, S, n): return [f'v_cvt_pk_bf16_f32 {v(D+i)}, {v(S+2*i)}, {v(S+2*i+1)}' for i in range(n)]
    def pack(self, D, S, n): self.a.add(self.pack_l(D, S, n))

    def prologue(self):
        a = self.a; o = self.o
        a('s_cmp_ge_u32 s2, 0x100'); a('s_cbranch_scc1 L_end')
        if o.diag or o.pad: a('s_memrealtime s[78:79]')
        self.st('start')
        a('s_load_dwordx16 s[4:19], s[0:1], 0'); a('s_load_dwordx8 s[20:27], s[0:1], 64')
        if o.cpf:
            a(f's_getpc_b64 {s(SH,2)}'); a(f's_and_b32 {s(SH)}, {s(SH)}, 0xffffff00'); a(f's_and_b32 {s(SH+1)}, {s(SH+1)}, 0xffff')
            a(f's_mov_b32 {s(SH+2)}, L_cpf_end-{NAME}_kernel'); a(f's_mov_b32 {s(SH+3)}, 0x20000')
            a(f's_lshr_b32 {s(sT)}, s2, 3'); a(f's_mul_i32 {s(sT)}, {s(sT)}, {128*o.cpf}')
            a('v_lshlrev_b32 v2, 7, v0'); a(f'v_cmp_gt_u32 vcc, {o.cpf}, v0'); a('v_cndmask_b32 v2, -1, v2, vcc')
            a(f'buffer_load_dword v109, v2, {s(SH,4)}, {s(sT)} offen')
        a(f'v_lshrrev_b32 v2, 6, v0'); a(f'v_and_b32 {v(vLane)}, 63, v0')
        a(f'v_readfirstlane_b32 {s(sW)}, v2')
        a(f's_and_b32 {s(sX)}, s2, 7'); a(f's_lshr_b32 {s(sJ)}, s2, 3')
        a(f's_and_b32 {s(sMem)}, {s(sJ)}, 15'); a(f's_lshr_b32 {s(sGb)}, {s(sJ)}, 4')
        a(f's_movk_i32 {s(sC4K)}, 0x1000')
        a(f's_lshl_b32 {s(sCp)}, {s(sX)}, 5'); a(f's_add_u32 {s(sCp)}, {s(sCp)}, {s(sJ)}')
        vTA = 94; vH0 = 95; vSK = 98; vCpl = 99; vOct = 100
        a(f'v_and_b32 {v(vCpl)}, 31, v0'); a(f'v_lshrrev_b32 {v(vOct)}, 5, v0')
        a(f's_lshl_b32 {s(sT)}, {s(sJ)}, 16'); a(f's_lshl_b32 {s(sT+1)}, {s(sX)}, 7'); a(f's_add_u32 {s(sT)}, {s(sT)}, {s(sT+1)}')
        a(f'v_lshlrev_b32 {v(vTA)}, 13, {v(vOct)}'); a(f'v_lshl_add_u32 {v(vTA)}, {v(vCpl)}, 2, {v(vTA)}'); a(f'v_add_u32 {v(vTA)}, {s(sT)}, {v(vTA)}')
        for e in range(3): a(f'v_subrev_u32 {v(vH0+e)}, {(3-e)*1024}, {v(vTA)}')
        a(f's_lshl_b32 {s(sT+1)}, {s(sX)}, 9'); a(f'v_lshl_add_u32 {v(vSK)}, {v(vCpl)}, 4, {s(sT+1)}')
        a(f'v_and_b32 {v(vB)}, 15, {v(vLane)}'); a(f'v_lshrrev_b32 {v(vGq)}, 4, {v(vLane)}')
        a(f'v_lshlrev_b32 {v(vT16)}, 4, v0')
        a(f's_lshl_b32 {s(sT)}, {s(sJ)}, 13'); a(f's_lshl_b32 {s(sT+1)}, {s(sW)}, 11'); a(f's_add_u32 {s(sT)}, {s(sT)}, {s(sT+1)}')
        a(f'v_lshl_add_u32 v101, {v(vB)}, 7, {s(sT)}')
        a(f's_lshl_b32 {s(sT)}, {s(sW)}, 10'); a(f's_add_u32 {s(sT)}, {s(sT)}, {AR_F1}'); a(f'v_lshl_add_u32 v102, {v(vB)}, 7, {s(sT)}')
        a(f'v_cmp_gt_u32 vcc, 16, {v(vLane)}'); a('v_cndmask_b32 v101, v102, v101, vcc')
        a(f's_cmp_eq_u32 {s(sMem)}, 0'); a(f's_cselect_b32 {s(sT)}, 24, 16')
        a(f'v_cmp_gt_u32 vcc, {s(sT)}, {v(vLane)}'); a('v_cndmask_b32 v101, -1, v101, vcc')
        if o.apf == 2:
            a(f'v_cmp_le_u32 vcc, 16, {v(vLane)}'); a('v_cndmask_b32 v101, -1, v101, vcc')
        a('s_waitcnt lgkmcnt(0)')
        self.st('karg')
        a(f's_load_dword {s(sNonce)}, s[26:27], 0')
        self.srd(SK, 6, 0x200000); self.srd(SV, 8, 0x200000)
        KR, VR, WR = 24, 35, 44
        for e in range(3): a(f'buffer_load_dword {v(KR+e)}, {v(vH0+e)}, {s(SK,4)}, 0 offen')
        for e in range(8): a(f'buffer_load_dword {v(KR+3+e)}, {v(vTA)}, {s(SK,4)}, {s(sC4K) if e>=4 else 0} offen offset:{(e&3)*1024}')
        a(f'global_load_dwordx4 {v(WR,4)}, {v(vSK)}, s[10:11]')
        for e in range(8): a(f'buffer_load_dword {v(VR+e)}, {v(vTA)}, {s(SV,4)}, {s(sC4K) if e>=4 else 0} offen offset:{(e&3)*1024}')
        a(f's_lshl_b32 {s(sT)}, {s(sCp)}, 2'); a(f's_load_dword {s(sD1)}, s[14:15], {s(sT)}')
        a(f's_lshl_b32 {s(sT)}, {s(sX)}, 21'); a(f's_add_u32 {s(sT)}, {s(sT)}, {WS_AR}')
        a(f's_add_u32 {s(SAR)}, s26, {s(sT)}'); a(f's_addc_u32 {s(SAR+1)}, s27, 0'); a(f's_and_b32 {s(SAR+1)}, {s(SAR+1)}, 0xffff')
        a(f's_mov_b32 {s(SAR+2)}, {AR_STRIDE}'); a(f's_mov_b32 {s(SAR+3)}, 0x20000')
        self.srd(SH, 12, 0x200000)
        a(f's_lshl_b32 {s(sT)}, {s(sCp)}, 13'); a(f's_add_u32 {s(sT+1)}, {s(sT)}, 4096'); a(f's_lshl_b32 {s(sT+2)}, {s(sW)}, 10')
        for c in range(2):
            a(f's_add_u32 m0, {s(sT+2)}, {L_H+32+c*H_CH}'); a('s_nop 0')
            a(f'buffer_load_dwordx4 {v(vT16)}, {s(SH,4)}, {s(sT+c)} offen lds', tag='h')
        if o.apf: a(f'buffer_load_dword v43, v101, {s(SAR,4)}, 0 offen sc1')
        self.st('iss1')
        if o.probe:
            for n, c in (('p_k0', 22), ('p_k', 12), ('p_sk', 11), ('p_v', 3), ('p_a', 2), ('p_h', 0)):
                a(f's_waitcnt vmcnt({c})'); a.add(self.stamp(n))
        self.srd(SWS, 26, 0x10000000); self.srd(SQ, 4, 0x200000); self.srd(SW2, 20, 0x1c0000); self.srd(SW1, 18, 0x1c0000)
        a(f's_cmp_ge_u32 {s(sMem)}, 14'); a(f's_cselect_b32 {s(SW1+2)}, 0, {s(SW1+2)}')
        a(f's_lshl_b32 {s(sT)}, {s(sX)}, 18'); a(f's_add_u32 {s(SO)}, s22, {s(sT)}'); a(f's_addc_u32 {s(SO+1)}, s23, 0'); a(f's_and_b32 {s(SO+1)}, {s(SO+1)}, 0xffff')
        a(f's_mov_b32 {s(SO+2)}, 0x40000'); a(f's_mov_b32 {s(SO+3)}, 0x20000')
        a(f's_and_b32 {s(sT)}, {s(sMem)}, 3'); a(f's_lshl_b32 {s(sRow)}, {s(sT)}, 5')
        a(f's_lshr_b32 {s(sT)}, {s(sW)}, 1'); a(f's_lshl_b32 {s(sT)}, {s(sT)}, 4'); a(f's_add_u32 {s(sRow)}, {s(sRow)}, {s(sT)}')
        a(f's_and_b32 {s(sT)}, {s(sMem)}, 12'); a(f's_add_u32 {s(sRow)}, {s(sRow)}, {s(sT)}')
        a(f's_and_b32 {s(sT)}, {s(sW)}, 1'); a(f's_lshl_b32 {s(sT)}, {s(sT)}, 1'); a(f's_add_u32 {s(sRow)}, {s(sRow)}, {s(sT)}')
        a(f's_lshl_b32 {s(sT)}, {s(sGb)}, 7'); a(f's_add_u32 {s(sRow)}, {s(sRow)}, {s(sT)}')
        a(f's_lshl_b32 {s(sT)}, {s(sRow)}, 10'); a(f'v_lshl_add_u32 {v(vRowA)}, {v(vLane)}, 4, {s(sT)}')
        a(f'v_lshrrev_b32 v22, 3, {v(vLane)}'); a(f'v_and_b32 v23, 1, {v(vGq)}'); a('v_lshlrev_b32 v23, 2, v23')
        a(f'v_and_b32 {v(vW2)}, 7, {v(vLane)}'); a(f'v_xor_b32 {v(vW2)}, {v(vW2)}, v23'); a(f'v_lshlrev_b32 {v(vW2)}, 4, {v(vW2)}'); a(f'v_lshl_add_u32 {v(vW2)}, v22, 10, {v(vW2)}')
        a(f's_mul_i32 {s(sT)}, {s(sW)}, {448*1024}'); a(f's_and_b32 {s(sT+1)}, {s(sMem)}, 7'); a(f's_lshl_b32 {s(sT+1)}, {s(sT+1)}, 7')
        a(f's_add_u32 {s(sT)}, {s(sT)}, {s(sT+1)}'); a(f'v_add_u32 {v(vW2)}, {s(sT)}, {v(vW2)}')
        a(f's_lshl_b32 {s(sWb)}, {s(sW)}, 15')
        a(f'v_lshlrev_b32 {v(vW1)}, 2, {v(vGq)}'); a(f'v_xor_b32 {v(vW1)}, {v(vW1)}, {v(vB)}'); a(f'v_lshlrev_b32 {v(vW1)}, 4, {v(vW1)}')
        a(f's_movk_i32 {s(sT)}, 3584'); a(f'v_mad_u32_u24 {v(vW1)}, {v(vGq)}, {s(sT)}, {v(vW1)}')
        a(f's_mul_i32 {s(sT)}, {s(sW)}, {128*3584}'); a(f's_lshl_b32 {s(sT+1)}, {s(sMem)}, 8'); a(f's_add_u32 {s(sT)}, {s(sT)}, {s(sT+1)}')
        a(f'v_add_u32 {v(vW1)}, {s(sT)}, {v(vW1)}')
        a(f's_mul_i32 {s(sT)}, {s(sW)}, {U_PAR}'); a(f's_add_u32 {s(sT)}, {s(sT)}, {L_U}')
        a(f'v_lshl_add_u32 v22, {v(vLane)}, 2, {s(sT)}'); a('v_mov_b32 v2, 0')
        a(f's_lshr_b32 {s(sT)}, {s(sW)}, 1'); a(f's_mul_i32 {s(sT)}, {s(sT)}, {H_CH}'); a(f's_and_b32 {s(sT+1)}, {s(sW)}, 1'); a(f's_lshl_b32 {s(sT+1)}, {s(sT+1)}, 4')
        a(f's_add_u32 {s(sT)}, {s(sT)}, {s(sT+1)}'); a(f's_add_u32 {s(sT)}, {s(sT)}, {L_H-240}')
        a(f'v_lshl_add_u32 v23, {v(vLane)}, 2, {s(sT)}'); a(f'v_cmp_gt_u32 vcc, 60, {v(vLane)}'); a('v_cndmask_b32 v22, v23, v22, vcc')
        a('ds_write_b32 v22, v2')
        a(f'v_and_b32 v22, 7, {v(vCpl)}'); a(f'v_xor_b32 v22, v22, {v(vOct)}'); a('v_lshlrev_b32 v22, 4, v22'); a(f'v_lshl_add_u32 v22, {v(vCpl)}, 8, v22')
        a(f'v_add_u32 {v(vTBw)}, {L_TB}, v22')
        a('v_lshrrev_b32 v22, 3, v0'); a('v_and_b32 v23, 7, v0')
        a('v_bfe_u32 v2, v0, 4, 3'); a('v_xor_b32 v2, v2, v23'); a('v_lshlrev_b32 v2, 4, v2'); a('v_lshl_add_u32 v2, v22, 7, v2')
        a(f'v_add_u32 {v(vTBr)}, {L_TB}, v2')
        a(f's_lshl_b32 {s(sT)}, {s(sJ)}, 7')
        a('v_lshlrev_b32 v22, 12, v22'); a('v_lshl_add_u32 v22, v23, 4, v22'); a(f'v_add_u32 {v(vUst)}, {s(sT)}, v22')
        a(f's_and_b32 {s(sT)}, {s(sW)}, 1'); a(f's_lshl_b32 {s(sT)}, {s(sT)}, 7'); a(f's_add_u32 {s(sT)}, {s(sT)}, 1')
        a(f'v_lshl_add_u32 v22, {v(vGq)}, 5, {v(vB)}'); a(f'v_add_u32 v22, {s(sT)}, v22')
        a(f'v_and_b32 {v(vSh)}, 1, v22'); a(f'v_lshlrev_b32 {v(vSh)}, 4, {v(vSh)}'); a('v_and_b32 v22, -2, v22')
        a(f's_lshr_b32 {s(sT)}, {s(sW)}, 1'); a(f's_mul_i32 {s(sT)}, {s(sT)}, {H_CH}'); a(f's_add_u32 {s(sT)}, {s(sT)}, {L_H}')
        a(f'v_lshl_add_u32 {v(vHA)}, v22, 1, {s(sT)}')
        a(f's_mov_b32 {s(sT)}, {AR_F1}'); a(f'v_lshl_add_u32 {v(vPollF)}, {v(vLane)}, 3, {s(sT)}')
        a(f's_lshl_b32 {s(sT+1)}, {s(sJ)}, 2'); a(f's_add_u32 {s(sT+1)}, {s(sT+1)}, {s(sW)}'); a(f's_lshl_b32 {s(sT+1)}, {s(sT+1)}, 2'); a(f's_add_u32 {s(sT)}, {s(sT)}, {s(sT+1)}')
        a(f'v_mov_b32 v22, {s(sT)}'); a(f'v_cmp_eq_u32 vcc, 0, {v(vLane)}'); a(f'v_cndmask_b32 {v(vMyF)}, -1, v22, vcc')
        a(f's_lshl_b32 {s(sT)}, {s(sCp)}, 4'); a(f's_add_u32 {s(sT)}, {s(sT)}, {WS_PF}'); a(f'v_mov_b32 v22, {s(sT)}')
        a('v_cmp_eq_u32 vcc, 0, v0'); a(f'v_cndmask_b32 {v(vPFm)}, -1, v22, vcc')
        a(f'v_bfe_u32 v22, {v(vLane)}, 2, 2'); a(f'v_lshrrev_b32 v23, 5, {v(vLane)}'); a('v_lshl_add_u32 v23, v23, 3, v22')
        a(f'v_lshl_add_u32 {v(vT2)}, v23, 7, {s(sWb)}')
        a(f'v_and_b32 v2, 1, {v(vGq)}'); a(f'v_lshl_add_u32 {v(vT2)}, v2, 5, {v(vT2)}')
        a(f'v_and_b32 v2, 3, {v(vLane)}'); a(f'v_lshl_add_u32 {v(vT2)}, v2, 3, {v(vT2)}')
        a('v_lshrrev_b32 v2, 1, v22'); a(f'v_lshl_add_u32 {v(vT2)}, v2, 6, {v(vT2)}')
        a(f'v_xor_b32 {v(vT2+1)}, 64, {v(vT2)}')
        a('v_and_b32 v22, 1, v0'); a(f'v_mul_u32_u24 v22, {U_PAR}, v22'); a('v_lshrrev_b32 v2, 1, v0'); a('v_lshl_add_u32 v22, v2, 4, v22')
        a(f'v_add_u32 {v(vUW)}, {L_U+240}, v22')
        a(f's_lshr_b32 {s(sT)}, {s(sW)}, 1'); a(f's_mul_i32 {s(sT)}, {s(sT)}, {U_CH}'); a(f's_and_b32 {s(sT+1)}, {s(sW)}, 1'); a(f's_lshl_b32 {s(sT+1)}, {s(sT+1)}, 7')
        a(f's_sub_u32 {s(sT)}, {s(sT)}, {s(sT+1)}'); a(f's_add_u32 {s(sT)}, {s(sT)}, {L_U+14*16}')
        a(f'v_lshlrev_b32 v2, 1, {v(vGq)}'); a(f'v_sub_u32 v2, {v(vB)}, v2'); a(f'v_lshl_add_u32 {v(vBB)}, v2, 4, {s(sT)}')
        a(f's_lshl_b32 {s(sT)}, {s(sW)}, 9'); a(f's_add_u32 {s(sT)}, {s(sT)}, {L_U+240+8}')
        a(f'v_lshl_add_u32 {v(vUD)}, {v(vB)}, 4, {s(sT)}')
        a(f'v_lshrrev_b32 v2, 1, {v(vGq)}'); a(f'v_mul_u32_u24 v2, {U_PAR}, v2'); a(f'v_add_u32 {v(vUD)}, {v(vUD)}, v2')
        a(f'v_and_b32 v2, 1, {v(vGq)}'); a('v_lshlrev_b32 v2, 3, v2'); a(f'v_sub_u32 {v(vUD)}, {v(vUD)}, v2')
        a(f's_lshl_b32 {s(sT)}, {s(sW)}, 13'); a(f's_add_u32 {s(sT)}, {s(sT)}, {L_P}'); a(f'v_lshl_add_u32 {v(vPw)}, {v(vLane)}, 4, {s(sT)}')
        a(f's_lshl_b32 {s(sT)}, {s(sW)}, 11'); a(f's_add_u32 {s(sT)}, {s(sT)}, {L_P}'); a(f'v_lshl_add_u32 {v(vPr)}, {v(vLane)}, 4, {s(sT)}')
        a(f's_mul_i32 {s(sNonce)}, {s(sNonce)}, 0x9e3779b1'); a(f's_add_u32 {s(sNonce)}, {s(sNonce)}, 0x7f4a7c15')
        a(f's_and_b32 {s(sNonce)}, {s(sNonce)}, 0xfffffff0')
        a(f's_lshl_b32 {s(sD0)}, {s(sD1)}, 16'); a(f's_and_b32 {s(sD1)}, {s(sD1)}, 0xffff0000')
        self.st('nonce')
        if o.mode == 'auto':
            a(f's_getreg_b32 {s(sT)}, hwreg(HW_REG_XCC_ID, 0, 4)'); a(f's_or_b32 {s(sExp)}, {s(sNonce)}, {s(sT)}')
            a(f's_lshl_b32 {s(sT)}, {s(sCp)}, 2'); a(f's_add_u32 {s(sT)}, {s(sT)}, {WS_XF}')
            a(f'v_mov_b32 v22, {s(sExp)}'); a(f'v_mov_b32 v23, {s(sT)}'); a('v_cmp_eq_u32 vcc, 0, v0'); a('v_cndmask_b32 v23, -1, v23, vcc')
            a(f'buffer_store_dword v22, v23, {s(SWS,4)}, 0 offen sc1')
        if o.mode == 'auto':
            a(f's_lshl_b32 {s(sT)}, {s(sX)}, 7'); a(f's_add_u32 {s(sT)}, {s(sT)}, {WS_XF}'); a(f'v_lshl_add_u32 v23, {v(vCpl)}, 2, {s(sT)}')
        pois = ['v_mov_b32 v88, -1', 'v_mov_b32 v89, -1', 'v_mov_b32 v90, -1', 'v_mov_b32 v91, -1',
                f's_lshl_b32 {s(sT)}, {s(sCp)}, 13', f's_add_u32 {s(sT)}, {s(sT)}, {WS_Y}', f's_add_u32 {s(sT+1)}, {s(sT)}, 4096'] + \
               [(f'buffer_store_dwordx4 v[88:91], {v(vT16)}, {s(SWS,4)}, {s(sT+c)} offen sc1', 'pois') for c in range(2)]
        if o.ppos: pois = [(x[0].replace('v[88:91]', 'v[104:107]'), x[1]) if isinstance(x, tuple) else x.replace('v88', 'v104').replace('v89', 'v105').replace('v90', 'v106').replace('v91', 'v107') for x in pois]
        self.pois = pois
        if o.ppos == 0: a.add(pois)
        qld = [f's_lshl_b32 {s(sT)}, {s(sX)}, 18'] + \
              [f'buffer_load_dwordx4 {v(QR+4*r,4)}, {v(vRowA)}, {s(SQ,4)}, {s(sT)} offen offset:{1024*r}' for r in range(2)]
        self.qld = qld
        if o.qpos == 0: a.add(qld)
        self.wi = 0; self.ntr = 0
        a.add(flat(self.D(o.d0)))
        self.st('issued')
        WP, KP, VP, SS = 48, 56, 78, 94
        L = self.unpack_l(KP, KR, 11)
        L += self.stamp('kv')
        xfl = [f'buffer_load_dword v22, v23, {s(SWS,4)}, 0 offen sc1'] if o.mode == 'auto' else []
        if o.xfpos == 0: L += xfl
        if o.qpos == 1: L += qld
        L += flat(self.D(o.d0b))
        for j in range(4):
            for c in range(2):
                src = WR + 2 * c + (j >> 1)
                L.append(f'v_lshlrev_b32 {v(WP+2*j+c)}, 16, {v(src)}' if j % 2 == 0 else f'v_and_b32 {v(WP+2*j+c)}, 0xffff0000, {v(src)}')
        for t in range(8): L.append(f'v_pk_mul_f32 {v(SS+2*t,2)}, {v(WP,2)}, {v(KP+2*(t+3),2)}')
        for j in (1, 2, 3):
            for t in range(8): L.append(f'v_pk_fma_f32 {v(SS+2*t,2)}, {v(WP+2*j,2)}, {v(KP+2*(t+3-j),2)}, {v(SS+2*t,2)}')
        L += self.unpack_l(VP, VR, 8)
        if o.xfpos == 1: L += xfl
        L += flat(self.D(o.d0c))
        for t in range(8): L.append(f'v_pk_mul_f32 {v(SS+2*t,2)}, {v(SS+2*t,2)}, {v(VP+2*t,2)}')
        for c in range(2):
            for jj in range(4): L.append(f'v_cvt_pk_bf16_f32 {v(24+4*c+jj)}, {v(SS+2*(7-2*jj)+c)}, {v(SS+2*(6-2*jj)+c)}')
            L.append(f'ds_write_b128 {v(vTBw)}, {v(24+4*c,4)} offset:{128*c}')
        a.add(L)
        a('s_waitcnt lgkmcnt(0)'); a('s_barrier')
        a(f'ds_read_b128 v[32:35], {v(vTBr)}'); a(f'ds_read_b128 v[36:39], {v(vTBr)} offset:4096')
        a(f's_mov_b32 {s(sT)}, {32*4096}')
        if o.xfpos == 2: a.add(xfl)
        a.add(self.ust('' if (o.mode != 'global' and o.apf == 1) else ' sc1'))
        self.st('T')
        a.add(flat(self.W(o.dT, 99)))
        a.wait_vm('h'); a('s_barrier')
        self.st('hok')
        self.hq = []
        for i in range(8):
            self.hq += self.hrd(i)
            if i >= 1: self.hq += flat([self.hal(i - 1, r) for r in range(o.nal)])
        self.hq += flat([self.hal(7, r) for r in range(o.nal)])
        a.add(self.H(o.nh1))

    def ust(self, sc):
        return [f'buffer_store_dwordx4 v[32:35], {v(vUst)}, {s(SAR,4)}, 0 offen{sc}',
                (f'buffer_store_dwordx4 v[36:39], {v(vUst)}, {s(SAR,4)}, {s(sT)} offen{sc}', 'ust')]
    def hrd(self, i):
        L = []
        if i and i % 2 == 0: L.append(f'v_add_u32 {v(vHA)}, 1024, {v(vHA)}')
        b = (i & 1) * 128
        for k in range(0, 16, 2): L.append(f'ds_read2_b32 {v(AF+16*i+k,2)}, {v(vHA)} offset0:{b+k} offset1:{b+k+1}')
        L.append(f'ds_read_b32 {v(XF+i)}, {v(vHA)} offset:{(b+16)*4}')
        return L
    def hal(self, i, r):
        return [f'v_alignbit_b32 {v(AF+16*i+k)}, {v(AF+16*i+k+1 if k<15 else XF+i)}, {v(AF+16*i+k)}, {v(vSh)}' for k in range(4 * r, 4 * r + 4)]
    def H(self, n):
        out = self.hq[:n]; self.hq = self.hq[n:]; return out

    def front(self):
        a = self.a; o = self.o; SC = self.SC; hal = self.hal
        if o.mode == 'auto' and not self.local: a.add(self.ust(' sc1') if o.apf == 1 else [('; issued', 'ust')])
        a.add(self.gsig(1, [waitvm('ust')]))
        self.st('ack1')
        self.stop(1)
        a.add(self.H(o.nh2))
        pl = [f'buffer_load_dwordx2 v[22:23], {v(vPollF)}, {s(SAR,4)}, 0 offen sc1']
        a.add(pl)
        a.add(flat(self.W(o.dF, 99)))
        a.add(self.H(o.nh3))
        a(f's_lshl_b32 {s(sT)}, {s(sJ)}, 13'); a(f's_add_u32 {s(sT+1)}, {s(sT)}, 4096')
        a.add(self.retry(pl, [f'v_subrev_u32 v22, {s(sExp)}, v22', f'v_subrev_u32 v23, {s(sExp)}, v23', 'v_max_u32 v22, v22, v23', 'v_cmp_le_u32 vcc, 16, v22']))
        self.st('S1')
        a(f'buffer_load_dwordx4 v[88:91], {v(vT16)}, {s(SAR,4)}, {s(sT)} offen sc1')
        a(f'buffer_load_dwordx4 v[92:95], {v(vT16)}, {s(SAR,4)}, {s(sT+1)} offen sc1')
        if o.ppos == 1: a.add(self.pois)
        if o.qpos == 2: a.add(self.qld)
        a.add(flat(self.W(o.d1, 99)))
        a.add(self.H(1000))
        a(f'ds_write_b128 {v(vUW)}, v[88:91]'); a(f'ds_write_b128 {v(vUW)}, v[92:95] offset:{U_CH}')
        a('s_waitcnt lgkmcnt(0)'); a('s_barrier')
        self.st('Uld')
        ACC, BR, UD, UF = 24, 56, 96, 88
        def bread(m, r):
            par = (31 - r) & 1; add = ((31 - r) >> 1) - 14
            return (f'ds_read_b128 {v(BR+4*m,4)}, {v(vBB)} offset:{par*U_PAR+(16*m+add)*16}', 'br')
        for m in range(8): a.add([bread(m, 0)])
        pfs = f'buffer_store_dword v2, {v(vPFm)}, {s(SWS,4)}, 0 offen sc1'
        if o.ppos == 0: a(pfs)
        sc = []
        for p in range(8):
            sc += [[f's_add_u32 {s(sT)}, {s(sX)}, {p}', f's_and_b32 {s(sT)}, {s(sT)}, 7', f's_lshl_b32 {s(sKO+p)}, {s(sT)}, 11']]
        sc += [[f's_sub_u32 {s(sT)}, {s(sX)}, 6', f's_cselect_b32 {s(sT)}, {s(sX)}, {s(sT)}']]
        for p in range(6):
            g = [f's_add_u32 {s(sT+1)}, {s(sT)}, 8', f's_lshl_b32 {s(sKO+8+p)}, {s(sT+1)}, 11']
            if p < 5: g += [f's_add_u32 {s(sT)}, {s(sT)}, 1', f's_cmp_eq_u32 {s(sT)}, 6', f's_cselect_b32 {s(sT)}, 0, {s(sT)}']
            sc.append(g)
        sc += [[f's_mov_b32 {s(sL2E)}, 0xbfb8aa3b', f's_lshl_b32 {s(sW1K)}, {s(sW)}, 10']]
        self.sc = sc
        main = []
        for r in range(4):
            rnd = []
            for m in range(8):
                for i in range(8 - m):
                    C = v(ACC + 4 * (i + m), 4)
                    it = [f'v_mfma_f32_16x16x32_bf16 {C}, {v(AF+16*i+4*r,4)}, {v(BR+4*m,4)}, {"0" if (r==0 and m==0) else C}']
                    if i == 7 - m and r < 3: it.append(bread(m, r + 1))
                    if r == 3 and m == 1 and i == 0: it += [waitds('br'), 's_barrier']
                    rnd.append(it)
            if r < 3:
                al = flat([hal(i, r + 1) for i in range(8)]) if r + 1 >= o.nal else []
                for k, x in enumerate(al): rnd[k + 1].append(x)
            else:
                ud = []
                for n2 in range(2):
                    for c in range(2):
                        b = (88 if n2 == 0 else 120) + 4 * c; sr = UD + 4 * n2 + 2 * c
                        ud += [f'v_and_b32 {v(b+0)}, 0xffff0000, {v(sr+1)}', f'v_lshlrev_b32 {v(b+1)}, 16, {v(sr+1)}',
                               f'v_and_b32 {v(b+2)}, 0xffff0000, {v(sr)}', f'v_lshlrev_b32 {v(b+3)}, 16, {v(sr)}']
                for k, x in enumerate(ud): rnd[k + 10].append(x)
                pos = [sum(8 - mm for mm in range(m)) for m in range(8)]
                for N in range(5):
                    rnd[min(max(pos[N] + 4, 11), 35)].append((f'ds_write_b128 {v(vPw)}, {v(ACC+4*N,4)} offset:{N*1024}', 'pw'))
            main += rnd
        for n2 in range(2):
            for c in range(2): main[40 + 2 * n2 + c].append(f'ds_read_b64 {v(UD+4*n2+2*c,2)}, {v(vUD)} offset:{c*U_CH+n2*256}')
        pfl = [f's_mov_b32 {s(sT+1)}, {WS_PF}', f'buffer_load_dword v19, {v(vT16)}, {s(SWS,4)}, {s(sT+1)} offen sc1']
        if o.ppos: main[o.ppb] += [waitvm('pois'), 's_barrier', pfs]
        if o.pfpos < 144: main[o.pfpos] += pfl
        if o.qpos == 3: main[2] += self.qld
        a.add(interleave(main, self.W(o.d2, o.lag2), start=0, end=o.d2end))
        self.st('convmf')
        a(f's_lshl_b32 {s(sT)}, {s(sCp)}, 13'); a(f's_lshl_b32 {s(sT+1)}, {s(sW)}, 11'); a(f's_add_u32 {s(sT)}, {s(sT)}, {s(sT+1)}'); a(f's_add_u32 {s(sT)}, {s(sT)}, {WS_Y}')
        a(f'v_lshlrev_b32 v22, 4, {v(vLane)}')
        for N in range(5, 8): a(f'ds_write_b128 {v(vPw)}, {v(ACC+4*N,4)} offset:{N*1024}')
        a('s_waitcnt lgkmcnt(0)'); a('s_barrier')
        for n2 in range(2):
            for w in range(4): a(f'ds_read_b128 {v(BR+16*n2+4*w,4)}, {v(vPr)} offset:{w*8192+n2*1024}')
        for n2 in range(2):
            U0 = 88 if n2 == 0 else 120
            for c in range(2):
                p = BR + 16 * n2 + 8 * c; b = U0 + 4 * c
                for r in range(4): a(f'v_fma_f32 {v(b+r)}, {v(b+r)}, {s(sD0+c)}, {v(p+r)}')
                for r in range(0, 4, 2): a(f'v_pk_add_f32 {v(b+r,2)}, {v(b+r,2)}, {v(p+4+r,2)}')
            for r in range(4): a(f'v_cvt_pk_bf16_f32 {v(128+4*n2+r)}, {v(U0+r)}, {v(U0+4+r)}')
            for r in range(4): a(f'v_min_u32 {v(128+4*n2+r)}, -2, {v(128+4*n2+r)}')
            a(f'buffer_store_dwordx4 {v(128+4*n2,4)}, v22, {s(SWS,4)}, {s(sT)} offen offset:{n2*1024} sc1')
        self.st('conv')
        self.stop(2)
        if o.pfpos >= 144: a.add(pfl)
        a.add(flat(self.W(o.d3)))
        self.unpack(RX, QR, 8)
        self.ln_stats(RX, RT)
        self.ln_apply(RN, RX)
        a.add(self.retry(pfl, self.ftest(19)))
        if o.apos == 0:
            a.add(flat(self.sc)); self.ffn_addrs()
        a(f's_lshl_b32 {s(sT)}, {s(sX)}, 10'); a(f's_and_b32 {s(sT+1)}, {s(sMem)}, 12'); a(f's_lshl_b32 {s(sT+1)}, {s(sT+1)}, 6'); a(f's_add_u32 {s(sT)}, {s(sT)}, {s(sT+1)}')
        a(f's_lshl_b32 {s(sT+1)}, {s(sGb)}, 7'); a(f's_add_u32 {s(sT)}, {s(sT)}, {s(sT+1)}')
        a(f's_and_b32 {s(sT+1)}, {s(sMem)}, 3'); a(f's_lshl_b32 {s(sT+1)}, {s(sT+1)}, 5'); a(f's_add_u32 {s(sT)}, {s(sT)}, {s(sT+1)}')
        a(f's_add_u32 {s(sT+2)}, {s(sT)}, {WS_Y}')
        a('v_lshrrev_b32 v104, 1, v0'); a('v_and_b32 v105, 1, v0')
        a('v_lshlrev_b32 v106, 13, v104'); a('v_lshl_add_u32 v106, v105, 4, v106'); a(f'v_add_u32 v106, {s(sT+2)}, v106'); a(f'v_add_u32 v107, {128*8192}, v106')
        a('v_lshlrev_b32 v105, 12, v105'); a('v_lshl_add_u32 v105, v104, 2, v105'); a(f'v_add_u32 v105, {L_YL}, v105')
        a(f's_lshl_b32 {s(sT)}, {s(sW)}, 11'); a(f's_add_u32 {s(sT)}, {s(sT)}, {L_YL}'); a(f'v_lshl_add_u32 v104, {v(vLane)}, 4, {s(sT)}')
        a.add(flat(self.W(o.d3b)))
        gl = [f'buffer_load_dwordx4 v[88:91], v106, {s(SWS,4)}, 0 offen sc1', f'buffer_load_dwordx4 v[92:95], v107, {s(SWS,4)}, 0 offen sc1']
        a('s_barrier')
        self.st('S2')
        a.add(gl)
        a.add(flat(self.W(o.d4)))
        if o.apos == 1:
            a.add(flat(self.sc)); self.ffn_addrs()
        a.add(flat(self.W(o.d4b)))
        a.add(self.retry(gl, ['v_max3_u32 v2, v88, v89, v90', 'v_max3_u32 v23, v91, v92, v93', 'v_max3_u32 v2, v2, v94, v95', 'v_max_u32 v2, v2, v23',
                              'v_cmp_eq_u32 vcc, -1, v2']))
        self.st('Yok')
        for e in range(2):
            for k in range(4): a(f'ds_write_b32 v105, {v(88+4*e+k)} offset:{k*1024+e*512}')
        a.add(flat(self.W(o.d5)))
        a('s_waitcnt lgkmcnt(0)'); a('s_barrier')
        a(f'ds_read_b128 {v(RST+8,4)}, v104'); a(f'ds_read_b128 {v(RST+12,4)}, v104 offset:1024')
        self.st('Yld')

    def ffn_addrs(self):
        a = self.a
        a(f's_lshl_b32 {s(sT)}, {s(sGb)}, 8'); a(f's_add_u32 {s(sT)}, {s(sT)}, {AR_FG}')
        a(f'v_lshl_add_u32 {v(vPollF)}, {v(vLane)}, 2, {s(sT)}')
        a(f's_lshl_b32 {s(sT+1)}, {s(sMem)}, 2'); a(f's_add_u32 {s(sT+1)}, {s(sT+1)}, {s(sW)}')
        a(f'v_cmp_eq_u32 vcc, {s(sT+1)}, {v(vLane)}'); a(f'v_cndmask_b32 {v(vMyF)}, -1, {v(vPollF)}, vcc')
        a(f's_lshl_b32 {s(sT)}, {s(sW)}, 2'); a(f'v_add_u32 v20, {s(sT)}, {v(vGq)}')
        a(f'v_xor_b32 v21, v20, {v(vB)}'); a('v_lshlrev_b32 v21, 4, v21'); a(f'v_lshl_add_u32 {v(vXD)}, v20, 10, v21')
        a(f's_lshl_b32 {s(sT)}, {s(sGb)}, 17'); a(f'v_add_u32 {v(vXD)}, {s(sT)}, {v(vXD)}')
        a(f'v_and_b32 v20, 31, {v(vLane)}'); a(f'v_lshrrev_b32 v21, 5, {v(vLane)}')
        a(f'v_xor_b32 v22, v21, {v(vB)}'); a('v_lshlrev_b32 v22, 4, v22'); a(f'v_lshl_add_u32 v22, v20, 8, v22')
        for e in range(8):
            a(f's_lshr_b32 {s(sT)}, {s(sKO+e)}, 6'); a(f'v_xor_b32 {v(XA+e)}, {s(sT)}, v22')
        a(f's_mul_i32 {s(sT+2)}, {s(sGb)}, {4*HF_TT}'); a(f's_add_u32 {s(sT+2)}, {s(sT+2)}, {AR_HF}')
        a(f's_lshl_b32 {s(sT)}, {s(sMem)}, 13'); a(f's_lshl_b32 {s(sT+1)}, {s(sW)}, 11'); a(f's_add_u32 {s(sT)}, {s(sT)}, {s(sT+1)}'); a(f's_add_u32 {s(sT)}, {s(sT)}, {s(sT+2)}')
        a(f's_cmp_ge_u32 {s(sMem)}, 14'); a(f's_cselect_b32 {s(sT)}, 0x40000000, {s(sT)}')
        a(f'v_lshl_add_u32 {v(vHS)}, {v(vLane)}, 4, {s(sT)}')
        a(f's_lshr_b32 {s(sT)}, {s(sMem)}, 3'); a(f's_mul_i32 {s(sT)}, {s(sT)}, {2*HF_TT}'); a(f's_mul_i32 {s(sT+1)}, {s(sW)}, 28672'); a(f's_add_u32 {s(sT)}, {s(sT)}, {s(sT+1)}')
        a(f's_add_u32 {s(sT)}, {s(sT)}, {s(sT+2)}')
        a(f'v_lshl_add_u32 {v(vHL)}, {v(vLane)}, 4, {s(sT)}'); a(f'v_add_u32 {v(vHL+1)}, {HF_TT}, {v(vHL)}')
        a(f'v_and_b32 v22, 7, {v(vLane)}'); a('v_xor_b32 v22, v22, v21'); a('v_lshlrev_b32 v22, 4, v22'); a('v_lshl_add_u32 v22, v20, 8, v22')
        a(f's_lshl_b32 {s(sT)}, {s(sW)}, 13'); a(f's_add_u32 {s(sT)}, {s(sT)}, 65536'); a(f'v_add_u32 {v(vRW)}, {s(sT)}, v22')
        a('v_lshrrev_b32 v20, 3, v0'); a('v_and_b32 v21, 7, v0'); a('v_and_b32 v22, 7, v20'); a('v_lshlrev_b32 v23, 1, v21'); a('v_xor_b32 v22, v22, v23')
        a('v_lshlrev_b32 v22, 4, v22'); a(f'v_lshl_add_u32 {v(vRR)}, v20, 8, v22'); a(f'v_add_u32 {v(vRR)}, 65536, {v(vRR)}')
        a(f's_lshr_b32 {s(sT)}, {s(sJ)}, 3'); a(f's_lshl_b32 {s(sT)}, {s(sT)}, 16'); a(f's_and_b32 {s(sT+1)}, {s(sMem)}, 7'); a(f's_lshl_b32 {s(sT+1)}, {s(sT+1)}, 7')
        a(f's_add_u32 {s(sT)}, {s(sT)}, {s(sT+1)}'); a('v_lshlrev_b32 v20, 10, v20'); a('v_lshl_add_u32 v20, v21, 4, v20'); a(f'v_add_u32 {v(vFO)}, {s(sT)}, v20')
        a(f'v_bfe_u32 v20, {v(vLane)}, 2, 2'); a(f'v_lshrrev_b32 v21, 5, {v(vLane)}'); a('v_lshl_add_u32 v21, v21, 3, v20')
        a(f'v_xor_b32 v22, {s(sW)}, v20'); a('v_lshlrev_b32 v22, 6, v22'); a(f'v_lshl_add_u32 {v(vT1)}, v21, 8, v22')
        a(f'v_and_b32 v22, 1, {v(vGq)}'); a(f'v_lshl_add_u32 {v(vT1)}, v22, 5, {v(vT1)}')
        a(f'v_and_b32 v22, 1, {v(vLane)}'); a(f'v_lshl_add_u32 {v(vT1)}, v22, 4, {v(vT1)}')
        a(f'v_bfe_u32 v22, {v(vLane)}, 1, 1'); a(f'v_lshl_add_u32 {v(vT1)}, v22, 3, {v(vT1)}')
        a(f'v_add_u32 {v(vT1+1)}, 0x10000, {v(vT1)}')
        a(f's_lshl_b32 {s(sT)}, {s(sRow)}, 3'); a(f's_add_u32 {s(sT)}, {s(sT)}, {AR_ST}')
        a(f'v_lshl_add_u32 v22, {v(vGq)}, 3, {s(sT)}'); a(f'v_and_b32 v21, 47, {v(vLane)}'); a('v_cmp_eq_u32 vcc, 0, v21'); a('v_cndmask_b32 v19, -1, v22, vcc')

    def r_tail(self, layer):
        a = self.a; SC = self.SC
        for i in range(8): a(f'v_pk_fma_f32 {v(RX+2*i,2)}, {v(RN+2*i,2)}, {v(RY+2*i,2)}, {v(RX+2*i,2)}')
        self.ln_stats(RX, RT)
        if layer == 1: a(f'buffer_store_dwordx2 {v(RT+2,2)}, v19, {s(SAR,4)}, 0 offen{SC}')
        for r in range(2):
            a.add(self.ln_apply_l(RN, RX, r)); a.add(self.pack_l(80 + 4 * r, RN + 8 * r, 4))
            a(f'buffer_store_dwordx4 {v(80+4*r,4)}, {v(vRowA)}, {s(SAR,4)}, 0 offen offset:{1024*r}{SC}', tag='xst')
        if layer == 0: self.pack(RST, RX, 8)

    def ffn(self, layer):
        a = self.a; o = self.o; SC = self.SC
        P = lambda k: getattr(o, f'{k}{layer}')
        order = [0, 2, 1, 3]
        XB = 56; NB = 6; LEAD = 4; ET = 80; PK = 88
        HB = 104; NH = 8; AC2 = [[24, 56], [40, 72]]
        phA, phB = (4, 5) if layer == 0 else (8, 9)
        hs = {'s': ' sc1', 'p': '', 'n': ' nt'}[P('hm')] if self.local else ' sc1'
        def epi(sl):
            A0 = 24 + 16 * (sl & 1); L = []
            for q in range(4):
                t = ET + 4 * (q & 1)
                for e in range(4): L.append(f'v_mul_f32 {v(t+e)}, {s(sL2E)}, {v(A0+4*q+e)}')
                for e in range(4): L.append(f'v_exp_f32 {v(t+e)}, {v(t+e)}')
                for e in range(4): L.append(f'v_add_f32 {v(t+e)}, 1.0, {v(t+e)}')
                for e in range(4): L.append(f'v_rcp_f32 {v(t+e)}, {v(t+e)}')
                for e in range(4): L.append(f'v_mul_f32 {v(t+e)}, {v(t+e)}, {v(A0+4*q+e)}')
                for e in range(2): L.append(f'v_cvt_pk_bf16_f32 {v(PK+2*q+e)}, {v(t+2*e)}, {v(t+2*e+1)}')
                if q & 1:
                    L.append([f's_mov_b32 {s(sT+3)}, {order[sl]*HF_TT}',
                              (f'buffer_store_dwordx4 {v(PK+4*(q>>1),4)}, {v(vHS)}, {s(SAR,4)}, {s(sT+3)} offen offset:{(q>>1)*1024}{hs}', f'hs{sl}')])
            return L
        wt = lambda f: 2 if isinstance(f, str) and f.startswith(TRANS) else 1
        def hld(i):
            hf, ks = divmod(i, 28)
            return [f'buffer_load_dwordx4 {v(HB+4*(i%NH),4)}, {v(vHL+hf)}, {s(SAR,4)}, {s(sKO+(ks>>1))} offen offset:{(ks&1)*1024} sc1']
        res = []
        if layer == 1:
            res.append([f'v_lshrrev_b32 v20, 10, {v(vFO)}', f's_mov_b32 {s(sT+2)}, {AR_ST}', 'v_lshlrev_b32 v20, 3, v20'])
            for hf in range(2):
                res.append([f'buffer_load_dwordx2 {v(RST+8+2*hf,2)}, v20, {s(SAR,4)}, {s(sT+2)} offen offset:{hf*256} sc1'])
            for hf in range(2):
                res.append([f's_mov_b32 {s(sT+2)}, {hf*32768}', f'buffer_load_dwordx4 {v(RST+4*hf,4)}, {v(vFO)}, {s(SAR,4)}, {s(sT+2)} offen sc1'])
            res.append([f'v_mov_b32 v20, {s(sNonce)}', 'v_or_b32 v21, s2, v0', 'v_cmp_eq_u32 vcc, 0, v21'])
            res.append(['v_cndmask_b32 v21, -1, v21, vcc', f'buffer_store_dword v20, v21, {s(SWS,4)}, 0 offen sc1'])
        Lskip = self.lab('g1skip'); Ljoin = self.lab('g2')
        a(f's_cmp_ge_u32 {s(sMem)}, 14'); a(f's_cbranch_scc1 {Lskip}')
        a.add([forget('x'), forget('hs')])
        xd = []
        for sl, tt in enumerate(order):
            for kq in range(4):
                for b in range(2):
                    g = [f's_add_u32 m0, {s(sW1K)}, {sl*32768+kq*8192+b*4096-kq*256}']
                    if kq == 0: g.append(f's_mov_b32 {s(sT+b)}, {tt*32768+b*16384}')
                    g.append((f'buffer_load_dwordx4 {v(vXD)}, {s(SAR,4)}, {s(sT+b)} offen offset:{kq*256} sc1 lds', f'x{sl}_{kq}'))
                    xd.append(g)
        bar = {(0, 0): 'x0_0', (0, 1): 'x0_1', (0, 2): 'x0_3', (1, 0): 'x1_1', (1, 2): 'x1_3', (2, 0): 'x3_3'}
        def rd(i):
            sl, ks = divmod(i, 32)
            pre = []
            if ks % 8 == 0 and (sl, ks // 8) in bar: pre = [waitvm(bar[(sl, ks // 8)]), 's_barrier']
            if sl == 2 and ks < 8: pre.append(f'v_xor_b32 {v(XA+ks)}, 0x10000, {v(XA+ks)}')
            L = pre + [(f'ds_read_b128 {v(XB+4*(i%NB),4)}, {v(XA+(ks&7))} offset:{(sl&1)*32768+(ks>>3)*8192}', f'r{i}')]
            if sl == 3 and ks >= 24: L.append(f'v_xor_b32 {v(XA+(ks&7))}, 0x10000, {v(XA+(ks&7))}')
            return L
        n0 = o.xd0
        a.add(flat(xd[:n0])); xi = n0
        for i in range(LEAD): a.add(rd(i))
        self.st(f'g1go{layer}')
        M = []
        for i in range(128):
            sl, ks = divmod(i, 32); C = v(24 + 16 * (sl & 1), 16)
            it = [waitds(f'r{i+1}')] if i % 2 == 0 else []
            it.append(f'v_mfma_f32_32x32x16_bf16 {C}, {ac(4*ks,4)}, {v(XB+4*(i%NB),4)}, {"0" if ks==0 else C}')
            if xi < 32 and i % 2 == 1:
                it.append(xd[xi][0])
                if i + LEAD < 128: it += rd(i + LEAD)
                it += xd[xi][1:]; xi += 1
            elif i + LEAD < 128: it += rd(i + LEAD)
            M.append(it)
        nb = P('bub')
        e3 = epi(3)
        bub = [[x] for x in e3[:nb]] + [[]]
        M2 = []
        for hf in range(2):
            for ks in range(28):
                i = 28 * hf + ks
                for dt in range(2):
                    C = v(AC2[hf][dt], 16)
                    it = [f'v_mfma_f32_32x32x16_bf16 {C}, {self.w2reg(ks,dt)}, {v(HB+4*(i%NH),4)}, {"0" if ks==0 else C}']
                    M2.append(it)
        def put(pos, items):
            if pos < 128: M[pos] += items
            elif pos < 1000: bub[min(pos - 128, len(bub) - 1)] += items
            else: M2[pos - 1000] += items
        wi0 = self.wi
        if layer == 0:
            nw = 88 - self.wi; w = self.D(nw)
            pos = [o.wb0 + (k * (o.wb1 - o.wb0)) // nw for k in range(nw)]
            for k in range(nw):
                r = wi0 + k - 64
                assert r < 8 or pos[k] >= (46 if r < 16 else 70)
            M[68] += ['s_barrier']
            for k in range(nw): put(pos[k], w[k])
        for k, g in enumerate(res): put(66 + 3 * k, g)
        put(P('fa'), self.gsig(phA, [waitvm('hs1')]))
        put(P('pa'), self.gload())
        put(P('ca'), self.gcheck() + self.stamp(f'A{layer}'))
        hp = P('ca')
        for i in range(NH):
            put(hp, hld(i))
            hp += 2 if hp < 127 else (1 if hp == 127 else P('hstep'))
        put(1000 + P('fb'), self.gsig(phB, [waitvm('hs3')]))
        put(1000 + P('pb'), self.gload())
        cb = 2 * (28 - NH) + 1
        M2[cb] += self.gcheck() + self.stamp(f'B{layer}')
        for i in range(NH, 56): M2[2 * (i - NH) + 1] += hld(i)
        def wb():
            L = self.lab('wb'); Lr = self.lab('wbr')
            self.ool([f'{L}:', 'buffer_wbl2 sc1', f's_branch {Lr}'])
            return [f's_or_b32 {s(sT+2)}, {s(sJ)}, {s(sW)}', f's_cbranch_scc0 {L}', f'{Lr}:']
        if self.local and layer == 1:
            if o.wba >= 0: M[o.wba] += wb()
            if o.wbb >= 0: M2[o.wbb] += wb()
        w2b = []
        if layer == 0:
            w2b.append([f's_mul_i32 {s(sT+2)}, {s(sW)}, {32768-8192}', f'v_subrev_u32 v9, {s(sT+2)}, v9', f'v_subrev_u32 v10, {s(sT+2)}, v10'])
            w2b.append([f'v_add_u32 v20, {L_AUX}, v9', f'v_add_u32 v21, {L_AUX}, v10'])
            for k in range(12):
                for dt in range(2):
                    g = [waitvm(f'w{64+2*k+1}')] if dt == 0 else []
                    for u in range(2):
                        ad = 20 + dt if k < 4 else 9 + dt
                        off = (k & 3) * 2048 + u * 512 + (32768 if k >= 8 else 0)
                        g.append(f'ds_read_b64_tr_b16 {self.w2reg(16+k,dt,2*u,2)}, {v(ad)} offset:{off}')
                    w2b.append(g)
            for k, g in enumerate(w2b): M2[o.trb0 + k] += g
        def red(hf):
            L = []
            for dt in range(2):
                for q in range(4):
                    c = (8 * dt + 2 * q) * 16
                    if c: L.append([f'v_xor_b32 v20, {c}, {v(vRW)}', (f'ds_write_b128 v20, {v(AC2[hf][dt]+4*q,4)} offset:{hf*32768}', 'rw')])
                    else: L.append([(f'ds_write_b128 {v(vRW)}, {v(AC2[hf][dt]+4*q,4)} offset:{hf*32768}', 'rw')])
            L.append(f'v_xor_b32 v21, 16, {v(vRR)}')
            L.append([waitds('rw'), 's_barrier'])
            R = lambda w, e: AC2[0][w >> 1] + 8 * (w & 1) + e
            for w in range(4):
                for e in range(2):
                    L.append(f'ds_read_b128 {v(R(w,4*e),4)}, {v(vRR) if e==0 else "v21"} offset:{hf*32768+w*8192}')
            X3 = 88 if hf == 0 else 136
            if hf == 0:
                if layer == 1:
                    for e in range(8): L.append(f'v_add_f32 {v(R(0,e))}, {v(R(0,e))}, {v(X3+e)}')
                for w in (1, 2, 3):
                    for e in range(8): L.append(f'v_add_f32 {v(R(0,e))}, {v(R(0,e))}, {v(R(w,e))}')
            else:
                if layer == 1:
                    for e in range(0, 8, 2): L.append(f'v_pk_add_f32 {v(R(0,e),2)}, {v(R(0,e),2)}, {v(X3+e,2)}')
                for w in (1, 2, 3):
                    for e in range(0, 8, 2): L.append(f'v_pk_add_f32 {v(R(0,e),2)}, {v(R(0,e),2)}, {v(R(w,e),2)}')
            for i in range(4): L.append(f'v_cvt_pk_bf16_f32 {v(R(1,i))}, {v(R(0,2*i))}, {v(R(0,2*i+1))}')
            L.append([f's_mov_b32 {s(sT)}, {hf*32768}',
                      (f'buffer_store_dwordx4 {v(R(1,0),4)}, {v(vFO)}, {s(SAR if layer==0 else SO,4)}, {s(sT)} offen{SC if layer==0 else " sc1"}', 'fst')])
            return L
        x3 = []
        if layer == 1:
            for hf in range(2):
                X3 = 88 if hf == 0 else 136; st = RST + 8 + 2 * hf
                x3 += [f'v_rcp_f32 {v(st)}, {v(st)}'] + self.unpack_l(X3, RST + 4 * hf, 4) + [f'v_mul_f32 {v(st+1)}, -{v(st+1)}, {v(st)}']
                x3 += [f'v_fma_f32 {v(X3+e)}, {v(X3+e)}, {v(st)}, {v(st+1)}' for e in range(8)]
        for sl in range(4):
            main = M[32 * sl:32 * sl + 32]
            a.add(interleave(main, epi(sl - 1), start=o.es, end=o.ee, weight=wt) if sl else flat(main))
            self.st(f'g1s{sl}_{layer}')
        a.add(flat(bub))
        a(f'{Ljoin}:')
        self.st(f'g2go{layer}')
        rest = e3[nb:]
        ne = max(1, min(28, (sum(wt(f) for f in rest) + 4) // 5))
        assert P('fb') >= ne
        M2a = [[x] for x in []]
        h0 = M2[:56]
        if x3:
            for k, x in enumerate(x3): h0[min(55, max(ne + 1, 30) + k // 2)].append(x)
        a.add(interleave(h0, rest, start=0, end=ne, weight=wt) if rest else flat(h0))
        self.st(f'g2h0_{layer}')
        a.add(interleave(M2[56:], red(0), start=o.rs, end=o.re))
        self.st(f'g2mf{layer}')
        a.add(flat(red(1)))
        idle = [f'{Lskip}:']
        if layer == 0:
            self.wi = wi0
            idle += flat(self.D(88 - wi0))
        idle += flat(res)
        idle += self.gsig(phA, ['s_waitcnt vmcnt(0) lgkmcnt(0)'])
        idle += self.gload() + self.gcheck()
        for i in range(NH): idle += hld(i)
        idle += ['s_waitcnt vmcnt(0)', f's_branch {Ljoin}']
        self.ool(idle)

    def body(self):
        a = self.a; o = self.o
        self.front()
        self.unpack(RY, RST + 8, 8)
        self.r_tail(0)
        self.st('R1')
        a.add(flat(self.W(64)))
        a.add(self.gsig(3, [waitvm('xst')]))
        self.st('ack3')
        self.stop(3)
        a('s_waitcnt vmcnt(0)'); a('s_barrier')
        self.st('w1ok')
        a.add(self.gload())
        for ks in range(32):
            for u in range(2):
                a(f'ds_read_b64_tr_b16 {ac(4*ks+2*u,2)}, {v(vT1 if ks<16 else vT1+1)} offset:{(ks&15)*4096+u*1024}')
        a.add(self.gcheck())
        a('s_waitcnt lgkmcnt(0)'); a('s_barrier')
        self.st('S3')
        self.ffn(0)
        a.add(self.gsig(6, [waitvm('fst')]))
        self.st('ack5')
        self.stop(5)
        self.unpack(RX, RST, 8); self.unpack(RY, RST + 8, 8)
        a.add(self.gload() + self.gcheck())
        self.st('S5')
        for r in range(2): a(f'buffer_load_dwordx4 {v(80+4*r,4)}, {v(vRowA)}, {s(SAR,4)}, 0 offen offset:{1024*r} sc1')
        self.unpack(RN, 80, 8)
        for i in range(8): a(f'v_pk_add_f32 {v(RX+2*i,2)}, {v(RX+2*i,2)}, {v(RN+2*i,2)}')
        self.ln_stats(RX, RT); self.ln_apply(RN, RX)
        self.r_tail(1)
        self.st('R2')
        a.add(self.gsig(7, [waitvm('xst')]))
        self.stop(6)
        a.add(self.gload() + self.gcheck())
        self.st('S6')
        self.ffn(1)

    def gen(self):
        o = self.o
        self.prologue()
        parts = []
        if o.mode == 'auto':
            a = self.a
            ld = [f'buffer_load_dword v22, v23, {s(SWS,4)}, 0 offen sc1']
            t1 = [f'v_xor_b32 v22, {s(sExp)}, v22', 'v_cmp_ne_u32 vcc, 0, v22']
            self.ool(['L_place:', f's_mov_b32 {s(sCnt)}, 0x8000', 'L_place_l:', 'v_cmp_le_u32 vcc, 16, v22', 's_cbranch_vccz L_global'] + ld +
                     ['s_waitcnt vmcnt(0)'] + t1 + ['s_cbranch_vccz L_local', f's_sub_u32 {s(sCnt)}, {s(sCnt)}, 1', 's_cbranch_scc0 L_place_l', 's_branch L_global'])
            a.add(t1 + ['s_cbranch_vccnz L_place', 'L_local:'])
            wi, ntr, hq = self.wi, self.ntr, list(self.hq)
            self.local = True; self.body()
            main = self.a; segs_l = self.segs; self.segs = []
            self.a = Asm(); self.a('L_global:'); self.a('s_waitcnt vmcnt(0) lgkmcnt(0)')
            for i in range(wi): self.a('; issued', tag=f'w{i}')
            for i in range(ntr): self.a('; issued', tag=f't{i}')
            self.wi, self.ntr, self.hq = wi, ntr, hq
            self.local = False; self.body(); self.a('s_branch L_fin')
            glob = [self.a] + self.segs
        else:
            self.local = (o.mode == 'local')
            self.body()
            main = self.a; segs_l = self.segs; glob = []
        a = main
        self.a = a
        a('L_fin:')
        if o.pad:
            a('s_waitcnt vmcnt(0)')
            self.st('end')
            a('s_waitcnt lgkmcnt(0)')
            a(f's_add_u32 s72, {"s88" if o.padstamp else "s78"}, {o.pad*100}')
            a('L_padl:'); a('s_memrealtime s[74:75]'); a('s_waitcnt lgkmcnt(0)'); a('s_sub_u32 s74, s74, s72'); a('s_cmp_lt_i32 s74, 0'); a('s_cbranch_scc1 L_padl')
        if o.diag:
            a('s_waitcnt vmcnt(0)')
            self.st('end')
            a('s_memrealtime s[74:75]')
            a('s_waitcnt lgkmcnt(0)')
            a('v_mov_b32 v20, 0')
            for n, i in self.stn.items(): a(f'v_writelane_b32 v20, {s(STAMPS[i])}, {i}')
            a('v_writelane_b32 v20, s78, 30'); a('v_writelane_b32 v20, s74, 31')
            a(f's_lshl_b32 {s(sT)}, s2, 2'); a(f's_add_u32 {s(sT)}, {s(sT)}, {s(sW)}'); a(f's_lshl_b32 {s(sT)}, {s(sT)}, 7'); a(f's_add_u32 {s(sT)}, {s(sT)}, {WS_DIAG}')
            a(f'v_lshlrev_b32 v21, 2, {v(vLane)}'); a('s_lshr_b64 exec, -1, 32')
            a(f'buffer_store_dword v20, v21, {s(SWS,4)}, {s(sT)} offen')
        a('L_end:')
        a('s_endpgm')
        body = ''; n = 0; npad = 0
        for k, x in enumerate([main] + segs_l + [None] + glob):
            if x is None:
                body += 'L_cpf_end:\n'; continue
            t, st = finalize(x); body += t; n += st['n']; npad += st['npad']
        body += '    s_endpgm\n'
        hdr = open('cdna_kernels/' + NAME + '.s.ref').read().split('; Override launch')[0]
        txt = hdr + '; @launch grid=(256,1,1) block=(256,1,1) lds=163840\n'
        if o.diag: txt += '; stamps: ' + ' '.join(self.stn.keys()) + '\n'
        txt += f'''.amdgcn_target "amdgcn-amd-amdhsa--gfx950"
.text
.globl {NAME}_kernel
.p2align 8
.type {NAME}_kernel,@function
{NAME}_kernel:
{body}.section .rodata,"a"
.p2align 6
.amdhsa_kernel {NAME}_kernel
  .amdhsa_next_free_vgpr 512
  .amdhsa_next_free_sgpr 102
  .amdhsa_accum_offset 256
  .amdhsa_group_segment_fixed_size 0
  .amdhsa_kernarg_size 96
  .amdhsa_user_sgpr_count 2
  .amdhsa_user_sgpr_kernarg_segment_ptr 1
  .amdhsa_system_sgpr_workgroup_id_x 1
  .amdhsa_float_denorm_mode_32 3
.end_amdhsa_kernel
'''
        return txt, dict(n=n, npad=npad)

DEF = dict(cpf=8, apf=2, qpos=3, xfpos=2, d0=4, d0b=0, d0c=2, dT=2, dF=6, d1=6, d2=18, d2end=140, d3=6, d3b=2, d4=6, d4b=2, d5=2, lag=12, lag2=18, ppos=1, ppb=60, apos=0, nal=4, nh1=80, nh2=40, nh3=60, pfpos=144,
           xd0=8, wb0=52, wb1=124, trb0=2, es=4, ee=30, rs=6, re=50, wba=62, wbb=-1, dbg=-1, pad=0, rt=0, probe=0,
           bub0=90, fa0=126, pa0=168, ca0=215, hstep0=0, fb0=16, pb0=30,
           bub1=90, fa1=108, pa1=118, ca1=127, hstep1=6, fb1=12, pb1=28)
def parser():
    ap = argparse.ArgumentParser()
    ap.add_argument('-o', default='cdna_kernels/' + NAME + '.s')
    ap.add_argument('--diag', action='store_true'); ap.add_argument('--stop', type=int, default=0)
    ap.add_argument('--stamps', default='')
    ap.add_argument('--mode', default='auto'); ap.add_argument('--padstamp', default='')
    ap.add_argument('--hm0', default='s'); ap.add_argument('--hm1', default='p')
    for k, d in DEF.items(): ap.add_argument('--' + k, type=int, default=d)
    return ap

if __name__ == '__main__':
    o = parser().parse_args()
    txt, st = G(o).gen()
    open(o.o, 'w').write(txt)
    print(o.o, st)
```

```python
import re

REG_RE = re.compile(r'\b([vas])(\d+)\b|\b([vas])\[(\d+):(\d+)\]')

def regs_of(op):
    op = op.strip()
    out = set()
    if op in ('vcc',): return {('s', 'vcc')}
    if op in ('exec',): return {('s', 'exec')}
    if op == 'm0': return {('s', 'm0')}
    for m in REG_RE.finditer(op):
        if m.group(1):
            out.add((m.group(1), int(m.group(2))))
        else:
            for i in range(int(m.group(4)), int(m.group(5)) + 1):
                out.add((m.group(3), i))
    return out

TRANS = ('v_exp_f32', 'v_log_f32', 'v_rcp_f32', 'v_rsq_f32', 'v_sqrt_f32', 'v_sin_f32', 'v_cos_f32')

class Ins:
    __slots__ = ('text', 'cond', 'tag', 'mn', 'ops', 'mods', 'kind', 'wr', 'rd', 'pseudo', 'mf')
    def __init__(self, text, cond=False, tag=None, pseudo=None):
        self.text = text; self.cond = cond; self.tag = tag; self.pseudo = pseudo
        self.kind = 'other'; self.wr = set(); self.rd = set(); self.mf = None
        self.mn = ''; self.ops = []; self.mods = ''
        if pseudo or text.endswith(':') or text.startswith('.') or text.startswith(';') or not text:
            self.kind = 'meta'
            return
        t = text.split(';')[0].strip()
        parts = t.split(None, 1)
        self.mn = mn = parts[0]
        rest = parts[1] if len(parts) > 1 else ''
        ops = []; depth = 0; cur = ''
        for ch in rest:
            if ch in '[(': depth += 1
            if ch in '])': depth -= 1
            if ch == ',' and depth == 0:
                ops.append(cur.strip()); cur = ''
            else:
                cur += ch
        if cur.strip(): ops.append(cur.strip())
        if ops:
            l = ops[-1].split(None, 1)
            ops[-1] = l[0]
            self.mods = l[1] if len(l) > 1 else ''
        self.ops = ops
        R = [regs_of(o) for o in ops]
        U = lambda xs: set().union(*xs) if xs else set()
        if mn.startswith('v_mfma'):
            self.kind = 'mfma'
            self.wr = R[0]; self.rd = U(R[1:])
            self.mf = dict(D=R[0], A=R[1], B=R[2], C=R[3], p=(8 if '32x32' in mn else 4))
        elif mn.startswith('v_'):
            self.kind = 'valu'
            if mn.startswith('v_cmp'):
                self.wr = R[0]; self.rd = U(R[1:])
            elif mn.startswith('v_permlane'):
                self.wr = U(R[:2]); self.rd = U(R[:2])
            elif mn.startswith(('v_fmac', 'v_dot2c', 'v_pk_fmac')):
                self.wr = R[0]; self.rd = U(R)
            elif mn.startswith(('v_add_co', 'v_sub_co', 'v_addc_co')):
                self.wr = U(R[:2]); self.rd = U(R[2:])
            elif mn.startswith('v_writelane'):
                self.wr = R[0]; self.rd = U(R)
            elif mn == 'v_nop':
                pass
            else:
                self.wr = R[0]; self.rd = U(R[1:])
                if '_dpp' in mn: self.rd |= R[0] if 'bound_ctrl' not in self.mods and False else set()
        elif mn.startswith(('buffer_load', 'global_load')):
            self.kind = 'vmem'
            if re.search(r'\blds\b', self.mods) or 'load_lds' in mn:
                self.rd = U(R) | {('s', 'm0')}
                self.kind = 'vmem'
            else:
                self.wr = R[0]; self.rd = U(R[1:])
        elif mn.startswith(('buffer_store', 'global_store')):
            self.kind = 'vmem'; self.rd = U(R)
        elif mn.startswith(('buffer_atomic', 'global_atomic')):
            self.kind = 'vmem'; self.rd = U(R)
            if 'sc0' in self.mods: self.wr = R[0]
        elif mn.startswith(('buffer_wbl2', 'buffer_inv')):
            self.kind = 'vmem'
        elif mn.startswith('ds_read') or mn.startswith(('ds_bpermute', 'ds_swizzle')):
            self.kind = 'ds'; self.wr = R[0]; self.rd = U(R[1:])
        elif mn.startswith('ds_'):
            self.kind = 'ds'; self.rd = U(R)
        elif mn.startswith(('s_load', 's_memtime', 's_memrealtime', 's_buffer_load')):
            self.kind = 'smem'; self.wr = R[0]; self.rd = U(R[1:])
        elif mn.startswith('s_'):
            self.kind = 'salu'
            if mn.startswith(('s_cmp', 's_cbranch', 's_branch', 's_waitcnt', 's_barrier', 's_nop', 's_endpgm', 's_sleep', 's_setprio', 's_bitcmp')):
                self.rd = U(R)
                if mn.startswith('s_cbranch_vcc'): self.rd |= {('s', 'vcc')}
            else:
                self.wr = R[0] if R else set(); self.rd = U(R[1:])
                if mn.startswith(('s_addk', 's_mulk', 's_cmov')): self.rd |= R[0]
                if 'saveexec' in mn: self.wr |= {('s', 'exec')}
        else:
            raise ValueError('unknown instr: ' + text)

    def states(self):
        if self.kind == 'meta': return 0
        if self.mn == 's_nop': return int(self.ops[0], 0) + 1
        return 1

class Asm:
    def __init__(self):
        self.ins = []
        self._cond = 0
        self.nlab = 0
    def __call__(self, text, tag=None):
        for line in text.split('\n'):
            line = line.strip()
            if line:
                self.ins.append(Ins(line, cond=bool(self._cond), tag=tag))
    def add(self, items):
        for it in items:
            if isinstance(it, Ins): self.ins.append(it)
            elif isinstance(it, tuple): self(it[0], tag=it[1])
            else: self(it)
    def lab(self, base):
        self.nlab += 1
        return f'L_{base}_{self.nlab}'
    def cond_begin(self): self._cond += 1
    def cond_end(self): self._cond -= 1
    def wait_vm(self, tag): self.ins.append(waitvm(tag))
    def wait_ds(self, tag): self.ins.append(waitds(tag))

def forget(prefix): return Ins('', pseudo=('forget', prefix))
def waitvm(tag): return Ins('', pseudo=('vm', tag))
def waitds(tag): return Ins('', pseudo=('ds', tag))

WC_RE = re.compile(r'(vmcnt|lgkmcnt)\((\d+)\)')

def insert_waits(ins):
    out = []
    vm = []
    lg = []
    def need(q, idx):
        return sum(1 for o in q[idx + 1:] if not o.cond)
    def apply(kind, n):
        q = vm if kind == 'vm' else lg
        keep = []
        for i, o in enumerate(q):
            if n == 0: continue
            if kind == 'lg' and o.kind == 'smem': keep.append(o); continue
            yo = sum(1 for y in q[i + 1:] if not y.cond and not (kind == 'lg' and y.kind == 'smem'))
            if yo >= n: continue
            keep.append(o)
        q[:] = keep
    seen = set()
    for I in ins:
        if I.tag: seen.add(I.tag)
        if I.pseudo:
            k, tag = I.pseudo
            if k == 'forget':
                seen.difference_update({x for x in seen if x.startswith(tag)}); continue
            assert tag in seen, f'wait on tag {tag} that was not issued yet'
            q = vm if k == 'vm' else lg
            idx = [i for i, o in enumerate(q) if o.tag == tag]
            if idx:
                if k == 'vm':
                    n = min(need(q, idx[-1]), 63)
                    out.append(Ins(f's_waitcnt vmcnt({n})', cond=I.cond)); apply('vm', n)
                else:
                    n = sum(1 for y in q[idx[-1] + 1:] if not y.cond and y.kind != 'smem')
                    n = min(n, 15)
                    out.append(Ins(f's_waitcnt lgkmcnt({n})', cond=I.cond)); apply('lg', n)
            continue
        if I.kind == 'meta':
            out.append(I); continue
        if I.mn == 's_waitcnt':
            if not I.cond:
                for k, n in WC_RE.findall(I.text):
                    apply('vm' if k == 'vmcnt' else 'lg', int(n))
            out.append(I); continue
        touched = I.rd | I.wr
        nv = None; nl = None
        for i in range(len(vm) - 1, -1, -1):
            if vm[i].wr & touched:
                nv = min(need(vm, i), 63); break
        for i in range(len(lg) - 1, -1, -1):
            if lg[i].wr & touched:
                if lg[i].kind == 'smem': nl = 0
                else:
                    n = sum(1 for y in lg[i + 1:] if not y.cond and y.kind != 'smem')
                    nl = min(n, 15) if nl is None else min(nl, n)
                if nl == 0: break
        if nv is not None or nl is not None:
            s = 's_waitcnt' + (f' vmcnt({nv})' if nv is not None else '') + (f' lgkmcnt({nl})' if nl is not None else '')
            out.append(Ins(s, cond=I.cond))
            if not I.cond:
                if nv is not None: apply('vm', nv)
                if nl is not None: apply('lg', nl)
            else:
                sv, sl = list(vm), list(lg)
                if nv is not None: apply('vm', nv)
                if nl is not None: apply('lg', nl)
                vm[:] = [o for o in sv if (o in vm) or not o.cond]
                lg[:] = [o for o in sl if (o in lg) or not o.cond]
        out.append(I)
        if I.kind == 'vmem': vm.append(I)
        elif I.kind in ('ds', 'smem'): lg.append(I)
    return out

def required_gap(P, C):
    g = 0
    vw = {r for r in P.wr if r[0] in 'va'}
    sw = {r for r in P.wr if r[0] == 's'}
    if P.kind == 'valu':
        if C.kind == 'mfma' and vw & C.rd: g = max(g, 2)
        if C.kind == 'valu':
            if P.mn.startswith(TRANS) and (vw & C.rd) and not C.mn.startswith(TRANS): g = max(g, 1)
            if P.mn.startswith(TRANS) and (vw & C.rd): g = max(g, 1)
            if ('_dpp' in C.mn or C.mn.startswith('v_permlane')) and (vw & C.rd): g = max(g, 2)
            if C.mn.startswith(('v_readlane', 'v_readfirstlane')) and (vw & C.rd): g = max(g, 1)
            if sw & C.rd: g = max(g, 4 if C.mn.startswith(('v_readlane', 'v_writelane')) else 2)
            if ('_sdwa' in P.mn or 'op_sel' in P.mods and not P.mn.startswith('v_pk_')) and (vw & (C.rd | C.wr)): g = max(g, 1)
        if C.kind == 'vmem' and (sw & C.rd): g = max(g, 5)
        if C.kind in ('salu', 'smem') and (sw & C.rd): g = max(g, 1)
    if P.kind == 'mfma':
        p = P.mf['p']; D = P.mf['D']
        full = 12 if p == 8 else 8
        if C.kind == 'mfma':
            if D & (C.mf['A'] | C.mf['B']): g = max(g, full)
            if D & C.mf['C']:
                if not (C.mf['C'] == D and C.mf['p'] == p): g = max(g, full - 2)
            elif D & C.mf['D'] and not (C.mf['D'] == D and C.mf['p'] == p): g = max(g, full - 2)
        elif C.kind in ('valu', 'vmem', 'ds'):
            if D & (C.rd | C.wr): g = max(g, full)
            if C.kind == 'valu' and (P.mf['C'] & C.wr): g = max(g, 7 if p == 8 else 3)
    if P.kind == 'salu' and ('s', 'm0') in P.wr and C.kind == 'vmem' and ('s', 'm0') in C.rd: g = max(g, 1)
    if P.kind == 'vmem' and 'store' in P.mn and ('x4' in P.mn or 'x3' in P.mn):
        data = regs_of(P.ops[0]) if P.mn.startswith('buffer') else regs_of(P.ops[1])
        if data & C.wr and C.kind in ('valu', 'mfma'): g = max(g, 2)
        elif data & C.wr: g = max(g, 1)
    return g

def insert_nops(ins):
    out = []
    npad = 0
    for I in ins:
        if I.kind != 'meta':
            dist = 0; need = 0
            for P in reversed(out):
                if dist >= 12: break
                if P.kind == 'meta': continue
                g = required_gap(P, I)
                if g > dist: need = max(need, g - dist)
                if not (P.cond and not I.cond): dist += P.states()
            if need:
                out.append(Ins(f's_nop {need - 1}', cond=I.cond)); npad += need
        out.append(I)
    return out, npad

def finalize(a):
    ins = insert_waits(a.ins)
    ins, npad = insert_nops(ins)
    lines = []
    for I in ins:
        lines.append(I.text if (I.text.endswith(':') or I.text.startswith('.')) else '    ' + I.text)
    return '\n'.join(lines) + '\n', dict(n=len([i for i in ins if i.kind != 'meta']), npad=npad)

def interleave(main, fill, start=0, end=None, weight=None):
    end = len(main) if end is None else end
    ng = end - start
    w = [(weight(f) if weight else 1) for f in fill]
    tot = sum(w)
    out = []; fi = 0; acc = 0.0
    for i, m in enumerate(main):
        out.extend(m if isinstance(m, list) else [m])
        if start <= i < end:
            target = tot * (i - start + 1) / ng
            while fi < len(fill) and acc + w[fi] / 2.0 <= target + 1e-9:
                f = fill[fi]
                out.extend(f if isinstance(f, list) else [f]); acc += w[fi]; fi += 1
    while fi < len(fill):
        f = fill[fi]; out.extend(f if isinstance(f, list) else [f]); fi += 1
    return out

def _txt(x):
    if isinstance(x, Ins): return x.text
    return x[0] if isinstance(x, tuple) else x
def classify(x):
    if isinstance(x, Ins) and x.pseudo: return ('l', 0) if x.pseudo[0] == 'forget' else ('s', 4)
    t = _txt(x)
    if t.endswith(':'): return 'l', 0
    if t.startswith('s_barrier'): return 'm', 16
    if t.startswith('s_cbranch'): return 'v', 10
    if t.startswith('s_'): return 's', 4
    if t.startswith('ds_write_b128'): return 'm', 20
    if t.startswith('ds_'): return 'm', 4
    if t.startswith('buffer_store_dwordx4'): return 'm', 28
    if t.startswith('buffer_store'): return 'm', 12
    if t.startswith(('buffer_', 'global_')): return 'm', 8
    if t.startswith(TRANS): return 'v', 8
    return 'v', 4

class Gap:
    def __init__(self, mf, budget):
        self.mf = mf; self.s0 = []; self.mem = []; self.val = []; self.left = budget; self.budget = budget; self.m0 = False; self.flex = 0
    def emit(self): return ([self.mf] if self.mf else []) + self.s0 + self.mem + self.val

def place(gaps, items, g, force=False):
    sec = 0
    i = 0; n = len(items)
    while i < n:
        x = items[i]
        if isinstance(x, int):
            g += x; sec = 0; i += 1; continue
        k, c = classify(x)
        if k == 'l':
            (gaps[g].val if sec == 2 else gaps[g].mem).append(x); i += 1; continue
        if k == 's':
            j = i
            while j < n and not isinstance(items[j], int) and classify(items[j])[0] == 's': j += 1
            if j < n and not isinstance(items[j], int) and classify(items[j])[0] == 'm':
                unit = items[i:j + 1]
            else:
                unit = None
        else:
            unit = [x] if k == 'm' else None
        if unit:
            usesm0 = any('m0' in _txt(u) for u in unit)
            if sec == 2: g += 1; sec = 0
            while True:
                G = gaps[g]
                free0 = (not G.s0) and len(unit) > 1 and sec == 0
                cost = sum(classify(u)[1] for u in unit) - (4 if free0 else 0)
                ok = (cost <= G.left) or (G.flex == 0 and cost > G.budget - 4) or (force and sec == 0) or g == len(gaps) - 1
                if ok and not (usesm0 and G.m0): break
                g += 1; sec = 0
            if free0: G.s0.append(unit[0]); G.mem += unit[1:]
            else: G.mem += unit
            G.left -= cost; G.m0 |= usesm0; G.flex += 0 if force else 1
            sec = 1; i += len(unit); continue
        while True:
            G = gaps[g]
            if k == 's' and sec == 0 and not G.s0:
                G.s0.append(x); break
            if c <= G.left or force or g == len(gaps) - 1:
                G.val.append(x); G.left -= c; G.flex += 0 if force else 1; sec = 2; break
            g += 1; sec = 0
        i += 1
    return g

def place_dag(gaps, ops, g0):
    where = {}; g = g0; last = g0
    todo = list(range(len(ops)))
    while todo:
        assert g < len(gaps), 'ran out of gaps'
        G = gaps[g]
        for o in list(todo):
            it, deps, lat = ops[o]
            if isinstance(it, list) and all(d in where and where[d][0] < g for d in deps):
                free0 = (not G.s0) and len(it) > 1
                cost = sum(classify(u)[1] for u in it) - (4 if free0 else 0)
                if cost <= G.left or G.left >= G.budget - 4:
                    if free0: G.s0.append(it[0]); G.mem += it[1:]
                    else: G.mem += it
                    G.left -= cost; G.flex += 1; where[o] = (g, -1); todo.remove(o); last = g
        progress = True
        while progress and G.left >= 4:
            progress = False
            cand = []
            for o in todo:
                it, deps, lat = ops[o]
                if isinstance(it, list): continue
                if not all(d in where and (where[d][0] < g or (lat == 0 and len(G.val) - where[d][1] >= 3)) for d in deps): continue
                if classify(it)[1] <= G.left: cand.append(o)
            if cand:
                tr = [o for o in cand if classify(ops[o][0])[1] == 8]
                pl = [o for o in cand if classify(ops[o][0])[1] != 8]
                ntr = sum(1 for x in G.val if classify(x)[1] == 8)
                o = tr[0] if tr and (ntr == 0 or len(pl) * 4 < G.left) else (pl[0] if pl else tr[0])
                where[o] = (g, len(G.val)); G.val.append(ops[o][0]); G.left -= classify(ops[o][0])[1]; G.flex += 1
                todo.remove(o); progress = True; last = g
        g += 1
    return last, where

def place_dag_fit(gaps, ops, g0, deadline):
    rng = range(g0, len(gaps))
    save = [(list(gaps[g].s0), list(gaps[g].mem), list(gaps[g].val), gaps[g].left, gaps[g].m0, gaps[g].flex) for g in rng]
    for a in range(0, 33):
        ex = [4 * (((k + 1) * a) // 8 - (k * a) // 8) for k in range(len(rng))]
        for k, g in enumerate(rng):
            G = gaps[g]; G.s0, G.mem, G.val = list(save[k][0]), list(save[k][1]), list(save[k][2])
            G.left, G.m0, G.flex = save[k][3] + ex[k], save[k][4], save[k][5]
        last, where = place_dag(gaps, ops, g0)
        for k, g in enumerate(rng): gaps[g].left -= ex[k]
        if last < deadline: return last
    raise AssertionError('does not fit')
```

```python
import sys, argparse
from asmlib import *

NAME = 'interleave_layers__ssm_conv_h3__dense_activation_silu__prompt'

def v(i, n=1): return f'v{i}' if n == 1 else f'v[{i}:{i+n-1}]'
def ac(i, n=1): return f'a{i}' if n == 1 else f'a[{i}:{i+n-1}]'
def s(i, n=1): return f's{i}' if n == 1 else f's[{i}:{i+n-1}]'
def flat(L):
    out = []
    for x in L:
        if isinstance(x, list): out.extend(flat(x))
        else: out.append(x)
    return out

WS_XF = 0x1000
WS_PF = 0x2000
WS_DIAG = 0x10000
WS_Y = 0x200000
WS_AR = 0x400000; AR_STRIDE = 0x200000
AR_A = 0x0; AR_HF = 0x40000
AR_F1 = 0x120000
AR_FG = AR_F1 + 0x200
AR_ST = AR_F1 + 0x400
HF_TT = 114688
L_AUX = 131072
L_TB = L_AUX; L_U = L_AUX + 8192; U_PAR = 2368; U_CH = 4736; L_H = L_U + 9472; H_CH = 4160
L_P = L_AUX; L_YL = L_AUX
SK, SV, SQ, SH, SW1, SW2, SWS, SO, SAR = 28, 32, 36, 40, 44, 48, 52, 56, 60
sKO = 28
sL2E = 42; sW1K = 43
sX, sJ, sW, sMem, sGb, sNonce, sExp, sCnt = 64, 65, 66, 67, 68, 69, 70, 71
sT = 72
sCp = 76; sWo = 77; sWb = 3
sC4K = 80; sRow = 81; sLN = 82; sD0 = 86; sD1 = 87
STAMPS = [88, 90, 92, 94, 96, 98, 100, 16, 24, 4, 6, 8, 10, 12, 14, 18, 20, 22]
vLane, vMyF, vPollF, vT16, vRowA = 1, 3, 4, 5, 7
vT2, vW2, vW1, vB, vGq = 9, 15, 16, 17, 18
vTBr, vHA, vBB, vUD, vUW, vPFm, vTBw, vUst, vSh, vPw, vPr = 6, 8, 11, 12, 13, 14, 19, 20, 21, 110, 111
QR = 112; XF = 120; AF = 128
vFO, vHS, vXD, vRW, vRR, vHL, vT1, XA = 5, 6, 8, 11, 12, 13, 110, 96
RST = 144
W2B = 160
RX, RN, RY, RT = 24, 40, 56, 72

class G:
    def __init__(self, opt):
        self.o = opt; self.a = Asm(); self.stn = {}; self.local = False
        self.want = set(opt.stamps.split(',')) if opt.stamps else None
        self.segs = []; self.nlab = 0
    def lab(self, b):
        self.nlab += 1; return f'L_{b}_{self.nlab}'
    def stamp(self, name):
        if self.o.pad and name == self.o.padstamp: return ['s_memrealtime s[88:89]']
        if self.o.diag and (self.want is None or name in self.want or name in ('start', 'end')):
            if name not in self.stn:
                if len(self.stn) >= len(STAMPS) - 1 and name != 'end': return []
                self.stn[name] = len(self.stn)
            return [f'{"s_memrealtime" if self.o.rt else "s_memtime"} {s(STAMPS[self.stn[name]], 2)}']
        return []
    def st(self, name): self.a.add(self.stamp(name))
    def srd(self, d, base, size):
        a = self.a
        a(f's_mov_b32 {s(d)}, {s(base)}'); a(f's_and_b32 {s(d+1)}, {s(base+1)}, 0xffff')
        a(f's_mov_b32 {s(d+2)}, {size}'); a(f's_mov_b32 {s(d+3)}, 0x20000')
    @property
    def SC(self): return '' if self.local else ' sc1'
    def ool(self, items):
        x = Asm(); x.add(items); self.segs.append(x)

    def spin(self, load, test, cond=False):
        Ll = self.lab('spin'); Lr = self.lab('ret'); Lb = self.lab('bail')
        self.ool([f'{Lb}:', f's_mov_b32 {s(sCnt)}, 0', 's_waitcnt vmcnt(0)', f's_branch {Lr}'])
        L = [f'{Ll}:'] + load + [f's_sub_u32 {s(sCnt)}, {s(sCnt)}, 1', f's_cbranch_scc1 {Lb}'] + test + [f's_cbranch_vccnz {Ll}']
        return ([Ins(x, cond=True) for x in L] if cond else L) + [f'{Lr}:'], Lr
    def retry(self, load, test):
        L, Lr = self.spin(load, test, True)
        return test + [f's_cbranch_vccz {Lr}'] + L
    def ftest(self, r): return [f'v_subrev_u32 {v(r)}, {s(sExp)}, {v(r)}', f'v_cmp_le_u32 vcc, 16, {v(r)}']
    def gsig(self, phase, wait):
        return [f's_add_u32 {s(sExp)}, {s(sNonce)}, {phase}', f'v_mov_b32 v2, {s(sExp)}'] + wait + \
               [f'buffer_store_dword v2, {v(vMyF)}, {s(SAR,4)}, 0 offen{self.SC}']
    def gload(self): return [f'buffer_load_dword v2, {v(vPollF)}, {s(SAR,4)}, 0 offen sc1']
    def gcheck(self): return self.retry(self.gload(), self.ftest(2))
    def gwait(self): return self.spin(self.gload(), self.ftest(2))[0]
    def stop(self, k):
        if self.o.stop == k: self.a('s_branch L_fin')

    def D(self, n):
        out = []
        for _ in range(n):
            i = self.wi
            if i >= 88: break
            self.wi += 1
            g = []
            if i < 32:
                if i == 0: g += [f's_lshl_b32 {s(sWo)}, {s(sX)}, 15']
                else:
                    g += [f's_add_u32 {s(sWo)}, {s(sWo)}, 8192']
                    if i % 4 == 0: g += [f's_and_b32 {s(sWo)}, {s(sWo)}, 0x3ffff']
                g = [f's_add_u32 m0, {s(sWb)}, {i*1024}'] + g
                g += [(f'buffer_load_dwordx4 {v(vW2)}, {s(SW2,4)}, {s(sWo)} offen lds', f'w{i}')]
            elif i < 64:
                r = i - 32
                if r == 0: g += [f's_mul_i32 {s(sWo)}, {s(sX)}, {4*14336}']
                else:
                    g += [f's_add_u32 {s(sWo)}, {s(sWo)}, 14336']
                    if r % 4 == 0: g += [f's_cmp_eq_u32 {s(sWo)}, {32*14336}', f's_cselect_b32 {s(sWo)}, 0, {s(sWo)}']
                g = [f's_add_u32 m0, {s(sWb)}, {r*1024}'] + g
                if r % 2 == 0: g = [waitds(f't{r//2}')] + g
                g += [(f'buffer_load_dwordx4 {v(vW1)}, {s(SW1,4)}, {s(sWo)} offen lds', f'w{i}')]
            else:
                r = i - 64
                base = [L_AUX, 0, 32768][r // 8] + (r % 8) * 1024
                if r == 0: g += [f's_lshl_b32 {s(sWb)}, {s(sW)}, 13']
                g += [f's_add_u32 m0, {s(sWb)}, {base}']
                g += [f's_lshl_b32 {s(sWo)}, {s(sKO+8+r//4)}, 4'] if r % 4 == 0 else [f's_add_u32 {s(sWo)}, {s(sWo)}, 8192']
                g += [(f'buffer_load_dwordx4 {v(vW2)}, {s(SW2,4)}, {s(sWo)} offen lds', f'w{i}')]
            out.append(g)
        return out
    def w2reg(self, ks, dt, off=0, n=4):
        return ac(128 + ks * 8 + dt * 4 + off, n) if ks < 16 else v(W2B + (ks - 16) * 8 + dt * 4 + off, n)
    def w2a_tr(self, k):
        g = []
        for dt in range(2):
            h = [waitvm(f'w{2*k+1}')] if dt == 0 else []
            for u in range(2):
                h.append((f'ds_read_b64_tr_b16 {self.w2reg(k,dt,2*u,2)}, {v(vT2+dt)} offset:{k*2048+u*512}', f't{k}'))
            g.append(h)
        return g
    def W(self, n, lag=None):
        lag = self.o.lag if lag is None else lag
        out = []
        for _ in range(n):
            if self.wi >= 64: break
            while self.ntr < 16 and (2 * self.ntr + 1 + lag <= self.wi or self.wi >= 32 + 2 * self.ntr):
                out += self.w2a_tr(self.ntr); self.ntr += 1
            out += self.D(1)
        return out
    def Wtr(self):
        out = []
        while self.ntr < 16 and 2 * self.ntr + 1 < self.wi:
            out += self.w2a_tr(self.ntr); self.ntr += 1
        return out

    def ln_stats(self, X, T, scaled=False):
        a = self.a
        for r in range(2):
            x = X + 8 * r; t = T + 4 * r
            a(f'v_pk_add_f32 {v(t,2)}, {v(x,2)}, {v(x+2,2)}')
            a(f'v_pk_mul_f32 {v(t+2,2)}, {v(x,2)}, {v(x,2)}')
        for k in (1, 2, 3):
            for r in range(2):
                x = X + 8 * r; t = T + 4 * r
                if k > 1: a(f'v_pk_add_f32 {v(t,2)}, {v(t,2)}, {v(x+2*k,2)}')
                a(f'v_pk_fma_f32 {v(t+2,2)}, {v(x+2*k,2)}, {v(x+2*k,2)}, {v(t+2,2)}')
        for r in range(2):
            t = T + 4 * r
            a(f'v_add_f32 {v(t)}, {v(t)}, {v(t+1)}')
            a(f'v_add_f32 {v(t+2)}, {v(t+2)}, {v(t+3)}')
        a(f'v_permlane32_swap_b32 {v(T)}, {v(T+2)}')
        a(f'v_permlane32_swap_b32 {v(T+4)}, {v(T+6)}')
        a(f'v_add_f32 {v(T)}, {v(T)}, {v(T+2)}')
        a(f'v_add_f32 {v(T+4)}, {v(T+4)}, {v(T+6)}')
        a(f'v_permlane16_swap_b32 {v(T)}, {v(T+4)}')
        a(f'v_add_f32 {v(T)}, {v(T)}, {v(T+4)}')
        for ro in (8, 4, 2, 1):
            a(f'v_add_f32_dpp {v(T)}, {v(T)}, {v(T)} row_ror:{ro} row_mask:0xf bank_mask:0xf')
        a(f'v_mul_f32 {v(T+1)}, 0x3b000000, {v(T)}')
        a(f'v_mul_f32 {v(T)}, 0x3b000000, {v(T)}')
        a(f'v_permlane32_swap_b32 {v(T)}, {v(T+1)}')
        a(f'v_fma_f32 {v(T+1)}, -{v(T)}, {v(T)}, {v(T+1)}')
        a(f'v_max_f32 {v(T+1)}, 0, {v(T+1)}')
        a(f'v_add_f32 {v(T+1)}, 0x3727c5ac, {v(T+1)}')
        if scaled: a(f'v_mul_f32 {v(T+1)}, 0x3ef5fdf0, {v(T+1)}')
        a(f'v_rsq_f32 {v(T+2)}, {v(T+1)}')
        a(f'v_mul_f32 {v(T+3)}, -{v(T)}, {v(T+2)}')
        a(f'v_readlane_b32 {s(sLN)}, {v(T+2)}, 0')
        a(f'v_readlane_b32 {s(sLN+2)}, {v(T+2)}, 16')
        a(f'v_readlane_b32 {s(sLN+1)}, {v(T+3)}, 0')
        a(f'v_readlane_b32 {s(sLN+3)}, {v(T+3)}, 16')
    def ln_apply_l(self, D, X, r):
        return [f'v_pk_fma_f32 {v(D+8*r+2*k,2)}, {v(X+8*r+2*k,2)}, {s(sLN+2*r,2)}, {s(sLN+2*r,2)} op_sel:[0,0,1] op_sel_hi:[1,0,1]' for k in range(4)]
    def ln_apply(self, D, X):
        for r in range(2): self.a.add(self.ln_apply_l(D, X, r))
    def unpack_l(self, D, S, n):
        L = []
        for i in range(n):
            L += [f'v_lshlrev_b32 {v(D+2*i)}, 16, {v(S+i)}', f'v_and_b32 {v(D+2*i+1)}, 0xffff0000, {v(S+i)}']
        return L
    def unpack(self, D, S, n): self.a.add(self.unpack_l(D, S, n))
    def pack_l(self, D, S, n): return [f'v_cvt_pk_bf16_f32 {v(D+i)}, {v(S+2*i)}, {v(S+2*i+1)}' for i in range(n)]
    def pack(self, D, S, n): self.a.add(self.pack_l(D, S, n))

    def prologue(self):
        a = self.a; o = self.o
        a('s_cmp_ge_u32 s2, 0x100'); a('s_cbranch_scc1 L_end')
        if o.diag or o.pad: a('s_memrealtime s[78:79]')
        self.st('start')
        a('s_load_dwordx16 s[4:19], s[0:1], 0'); a('s_load_dwordx8 s[20:27], s[0:1], 64')
        if o.cpf:
            a(f's_getpc_b64 {s(SH,2)}'); a(f's_and_b32 {s(SH)}, {s(SH)}, 0xffffff00'); a(f's_and_b32 {s(SH+1)}, {s(SH+1)}, 0xffff')
            a(f's_mov_b32 {s(SH+2)}, L_cpf_end-{NAME}_kernel'); a(f's_mov_b32 {s(SH+3)}, 0x20000')
            a(f's_lshr_b32 {s(sT)}, s2, 3'); a(f's_mul_i32 {s(sT)}, {s(sT)}, {128*o.cpf}')
            a('v_lshlrev_b32 v2, 7, v0'); a(f'v_cmp_gt_u32 vcc, {o.cpf}, v0'); a('v_cndmask_b32 v2, -1, v2, vcc')
            a(f'buffer_load_dword v109, v2, {s(SH,4)}, {s(sT)} offen')
        a(f'v_lshrrev_b32 v2, 6, v0'); a(f'v_and_b32 {v(vLane)}, 63, v0')
        a(f'v_readfirstlane_b32 {s(sW)}, v2')
        a(f's_and_b32 {s(sX)}, s2, 7'); a(f's_lshr_b32 {s(sJ)}, s2, 3')
        a(f's_and_b32 {s(sMem)}, {s(sJ)}, 15'); a(f's_lshr_b32 {s(sGb)}, {s(sJ)}, 4')
        a(f's_movk_i32 {s(sC4K)}, 0x1000'); a(f's_mov_b32 {s(sCnt)}, 0x10000')
        a(f's_lshl_b32 {s(sCp)}, {s(sX)}, 5'); a(f's_add_u32 {s(sCp)}, {s(sCp)}, {s(sJ)}')
        vTA = 94; vH0 = 95; vSK = 98; vCpl = 99; vOct = 100
        a(f'v_and_b32 {v(vCpl)}, 31, v0'); a(f'v_lshrrev_b32 {v(vOct)}, 5, v0')
        a(f's_lshl_b32 {s(sT)}, {s(sJ)}, 16'); a(f's_lshl_b32 {s(sT+1)}, {s(sX)}, 7'); a(f's_add_u32 {s(sT)}, {s(sT)}, {s(sT+1)}')
        a(f'v_lshlrev_b32 {v(vTA)}, 13, {v(vOct)}'); a(f'v_lshl_add_u32 {v(vTA)}, {v(vCpl)}, 2, {v(vTA)}'); a(f'v_add_u32 {v(vTA)}, {s(sT)}, {v(vTA)}')
        for e in range(3): a(f'v_subrev_u32 {v(vH0+e)}, {(3-e)*1024}, {v(vTA)}')
        a(f's_lshl_b32 {s(sT+1)}, {s(sX)}, 9'); a(f'v_lshl_add_u32 {v(vSK)}, {v(vCpl)}, 4, {s(sT+1)}')
        a(f'v_and_b32 {v(vB)}, 15, {v(vLane)}'); a(f'v_lshrrev_b32 {v(vGq)}, 4, {v(vLane)}')
        a(f'v_lshlrev_b32 {v(vT16)}, 4, v0')
        a(f's_lshl_b32 {s(sT)}, {s(sJ)}, 13'); a(f's_lshl_b32 {s(sT+1)}, {s(sW)}, 11'); a(f's_add_u32 {s(sT)}, {s(sT)}, {s(sT+1)}')
        a(f'v_lshl_add_u32 v101, {v(vB)}, 7, {s(sT)}')
        a(f's_lshl_b32 {s(sT)}, {s(sW)}, 10'); a(f's_add_u32 {s(sT)}, {s(sT)}, {AR_F1}'); a(f'v_lshl_add_u32 v102, {v(vB)}, 7, {s(sT)}')
        a(f'v_cmp_gt_u32 vcc, 16, {v(vLane)}'); a('v_cndmask_b32 v101, v102, v101, vcc')
        a(f's_cmp_eq_u32 {s(sMem)}, 0'); a(f's_cselect_b32 {s(sT)}, 24, 16')
        a(f'v_cmp_gt_u32 vcc, {s(sT)}, {v(vLane)}'); a('v_cndmask_b32 v101, -1, v101, vcc')
        if o.apf == 2:
            a(f'v_cmp_le_u32 vcc, 16, {v(vLane)}'); a('v_cndmask_b32 v101, -1, v101, vcc')
        a('s_waitcnt lgkmcnt(0)')
        self.st('karg')
        a(f's_load_dword {s(sNonce)}, s[26:27], 0')
        self.srd(SK, 6, 0x200000); self.srd(SV, 8, 0x200000)
        KR, VR, WR = 24, 35, 44
        for e in range(3): a(f'buffer_load_dword {v(KR+e)}, {v(vH0+e)}, {s(SK,4)}, 0 offen')
        for e in range(8): a(f'buffer_load_dword {v(KR+3+e)}, {v(vTA)}, {s(SK,4)}, {s(sC4K) if e>=4 else 0} offen offset:{(e&3)*1024}')
        a(f'global_load_dwordx4 {v(WR,4)}, {v(vSK)}, s[10:11]')
        for e in range(8): a(f'buffer_load_dword {v(VR+e)}, {v(vTA)}, {s(SV,4)}, {s(sC4K) if e>=4 else 0} offen offset:{(e&3)*1024}')
        a(f's_lshl_b32 {s(sT)}, {s(sCp)}, 2'); a(f's_load_dword {s(sD1)}, s[14:15], {s(sT)}')
        a(f's_lshl_b32 {s(sT)}, {s(sX)}, 21'); a(f's_add_u32 {s(sT)}, {s(sT)}, {WS_AR}')
        a(f's_add_u32 {s(SAR)}, s26, {s(sT)}'); a(f's_addc_u32 {s(SAR+1)}, s27, 0'); a(f's_and_b32 {s(SAR+1)}, {s(SAR+1)}, 0xffff')
        a(f's_mov_b32 {s(SAR+2)}, {AR_STRIDE}'); a(f's_mov_b32 {s(SAR+3)}, 0x20000')
        self.srd(SH, 12, 0x200000)
        a(f's_lshl_b32 {s(sT)}, {s(sCp)}, 13'); a(f's_add_u32 {s(sT+1)}, {s(sT)}, 4096'); a(f's_lshl_b32 {s(sT+2)}, {s(sW)}, 10')
        for c in range(2):
            a(f's_add_u32 m0, {s(sT+2)}, {L_H+32+c*H_CH}'); a('s_nop 0')
            a(f'buffer_load_dwordx4 {v(vT16)}, {s(SH,4)}, {s(sT+c)} offen lds', tag='h')
        if o.apf: a(f'buffer_load_dword v43, v101, {s(SAR,4)}, 0 offen sc1')
        self.st('iss1')
        if o.probe:
            for n, c in (('p_k0', 22), ('p_k', 12), ('p_sk', 11), ('p_v', 3), ('p_a', 2), ('p_h', 0)):
                a(f's_waitcnt vmcnt({c})'); a.add(self.stamp(n))
        self.srd(SWS, 26, 0x10000000); self.srd(SQ, 4, 0x200000); self.srd(SW2, 20, 0x1c0000); self.srd(SW1, 18, 0x1c0000)
        a(f's_cmp_ge_u32 {s(sMem)}, 14'); a(f's_cselect_b32 {s(SW1+2)}, 0, {s(SW1+2)}')
        a(f's_lshl_b32 {s(sT)}, {s(sX)}, 18'); a(f's_add_u32 {s(SO)}, s22, {s(sT)}'); a(f's_addc_u32 {s(SO+1)}, s23, 0'); a(f's_and_b32 {s(SO+1)}, {s(SO+1)}, 0xffff')
        a(f's_mov_b32 {s(SO+2)}, 0x40000'); a(f's_mov_b32 {s(SO+3)}, 0x20000')
        a(f's_and_b32 {s(sT)}, {s(sMem)}, 3'); a(f's_lshl_b32 {s(sRow)}, {s(sT)}, 5')
        a(f's_lshr_b32 {s(sT)}, {s(sW)}, 1'); a(f's_lshl_b32 {s(sT)}, {s(sT)}, 4'); a(f's_add_u32 {s(sRow)}, {s(sRow)}, {s(sT)}')
        a(f's_and_b32 {s(sT)}, {s(sMem)}, 12'); a(f's_add_u32 {s(sRow)}, {s(sRow)}, {s(sT)}')
        a(f's_and_b32 {s(sT)}, {s(sW)}, 1'); a(f's_lshl_b32 {s(sT)}, {s(sT)}, 1'); a(f's_add_u32 {s(sRow)}, {s(sRow)}, {s(sT)}')
        a(f's_lshl_b32 {s(sT)}, {s(sGb)}, 7'); a(f's_add_u32 {s(sRow)}, {s(sRow)}, {s(sT)}')
        a(f's_lshl_b32 {s(sT)}, {s(sRow)}, 10'); a(f'v_lshl_add_u32 {v(vRowA)}, {v(vLane)}, 4, {s(sT)}')
        a(f'v_lshrrev_b32 v22, 3, {v(vLane)}'); a(f'v_and_b32 v23, 1, {v(vGq)}'); a('v_lshlrev_b32 v23, 2, v23')
        a(f'v_and_b32 {v(vW2)}, 7, {v(vLane)}'); a(f'v_xor_b32 {v(vW2)}, {v(vW2)}, v23'); a(f'v_lshlrev_b32 {v(vW2)}, 4, {v(vW2)}'); a(f'v_lshl_add_u32 {v(vW2)}, v22, 10, {v(vW2)}')
        a(f's_mul_i32 {s(sT)}, {s(sW)}, {448*1024}'); a(f's_and_b32 {s(sT+1)}, {s(sMem)}, 7'); a(f's_lshl_b32 {s(sT+1)}, {s(sT+1)}, 7')
        a(f's_add_u32 {s(sT)}, {s(sT)}, {s(sT+1)}'); a(f'v_add_u32 {v(vW2)}, {s(sT)}, {v(vW2)}')
        a(f's_lshl_b32 {s(sWb)}, {s(sW)}, 15')
        a(f'v_lshlrev_b32 {v(vW1)}, 2, {v(vGq)}'); a(f'v_xor_b32 {v(vW1)}, {v(vW1)}, {v(vB)}'); a(f'v_lshlrev_b32 {v(vW1)}, 4, {v(vW1)}')
        a(f's_movk_i32 {s(sT)}, 3584'); a(f'v_mad_u32_u24 {v(vW1)}, {v(vGq)}, {s(sT)}, {v(vW1)}')
        a(f's_mul_i32 {s(sT)}, {s(sW)}, {128*3584}'); a(f's_lshl_b32 {s(sT+1)}, {s(sMem)}, 8'); a(f's_add_u32 {s(sT)}, {s(sT)}, {s(sT+1)}')
        a(f'v_add_u32 {v(vW1)}, {s(sT)}, {v(vW1)}')
        a(f's_mul_i32 {s(sT)}, {s(sW)}, {U_PAR}'); a(f's_add_u32 {s(sT)}, {s(sT)}, {L_U}')
        a(f'v_lshl_add_u32 v22, {v(vLane)}, 2, {s(sT)}'); a('v_mov_b32 v2, 0')
        a(f's_lshr_b32 {s(sT)}, {s(sW)}, 1'); a(f's_mul_i32 {s(sT)}, {s(sT)}, {H_CH}'); a(f's_and_b32 {s(sT+1)}, {s(sW)}, 1'); a(f's_lshl_b32 {s(sT+1)}, {s(sT+1)}, 4')
        a(f's_add_u32 {s(sT)}, {s(sT)}, {s(sT+1)}'); a(f's_add_u32 {s(sT)}, {s(sT)}, {L_H-240}')
        a(f'v_lshl_add_u32 v23, {v(vLane)}, 2, {s(sT)}'); a(f'v_cmp_gt_u32 vcc, 60, {v(vLane)}'); a('v_cndmask_b32 v22, v23, v22, vcc')
        a('ds_write_b32 v22, v2')
        if o.iw:
            a('s_mov_b64 exec, 0')
            for w in range(3):
                a(f's_cmp_eq_u32 {s(sW)}, {w}'); a(f's_cbranch_scc1 L_hop_{w+1}')
            a('s_branch L_hop_4')
            a('L_hop_back:'); a('s_mov_b64 exec, -1')
            self.st('iw')
        a(f'v_and_b32 v22, 7, {v(vCpl)}'); a(f'v_xor_b32 v22, v22, {v(vOct)}'); a('v_lshlrev_b32 v22, 4, v22'); a(f'v_lshl_add_u32 v22, {v(vCpl)}, 8, v22')
        a(f'v_add_u32 {v(vTBw)}, {L_TB}, v22')
        a('v_lshrrev_b32 v22, 3, v0'); a('v_and_b32 v23, 7, v0')
        a('v_bfe_u32 v2, v0, 4, 3'); a('v_xor_b32 v2, v2, v23'); a('v_lshlrev_b32 v2, 4, v2'); a('v_lshl_add_u32 v2, v22, 7, v2')
        a(f'v_add_u32 {v(vTBr)}, {L_TB}, v2')
        a(f's_lshl_b32 {s(sT)}, {s(sJ)}, 7')
        a('v_lshlrev_b32 v22, 12, v22'); a('v_lshl_add_u32 v22, v23, 4, v22'); a(f'v_add_u32 {v(vUst)}, {s(sT)}, v22')
        a(f's_and_b32 {s(sT)}, {s(sW)}, 1'); a(f's_lshl_b32 {s(sT)}, {s(sT)}, 7'); a(f's_add_u32 {s(sT)}, {s(sT)}, 1')
        a(f'v_lshl_add_u32 v22, {v(vGq)}, 5, {v(vB)}'); a(f'v_add_u32 v22, {s(sT)}, v22')
        a(f'v_and_b32 {v(vSh)}, 1, v22'); a(f'v_lshlrev_b32 {v(vSh)}, 4, {v(vSh)}'); a('v_and_b32 v22, -2, v22')
        a(f's_lshr_b32 {s(sT)}, {s(sW)}, 1'); a(f's_mul_i32 {s(sT)}, {s(sT)}, {H_CH}'); a(f's_add_u32 {s(sT)}, {s(sT)}, {L_H}')
        a(f'v_lshl_add_u32 {v(vHA)}, v22, 1, {s(sT)}')
        a(f's_mov_b32 {s(sT)}, {AR_F1}'); a(f'v_lshl_add_u32 {v(vPollF)}, {v(vLane)}, 3, {s(sT)}')
        a(f's_lshl_b32 {s(sT+1)}, {s(sJ)}, 2'); a(f's_add_u32 {s(sT+1)}, {s(sT+1)}, {s(sW)}'); a(f's_lshl_b32 {s(sT+1)}, {s(sT+1)}, 2'); a(f's_add_u32 {s(sT)}, {s(sT)}, {s(sT+1)}')
        a(f'v_mov_b32 v22, {s(sT)}'); a(f'v_cmp_eq_u32 vcc, 0, {v(vLane)}'); a(f'v_cndmask_b32 {v(vMyF)}, -1, v22, vcc')
        a(f's_lshl_b32 {s(sT)}, {s(sCp)}, 4'); a(f's_add_u32 {s(sT)}, {s(sT)}, {WS_PF}'); a(f'v_mov_b32 v22, {s(sT)}')
        a('v_cmp_eq_u32 vcc, 0, v0'); a(f'v_cndmask_b32 {v(vPFm)}, -1, v22, vcc')
        a(f'v_bfe_u32 v22, {v(vLane)}, 2, 2'); a(f'v_lshrrev_b32 v23, 5, {v(vLane)}'); a('v_lshl_add_u32 v23, v23, 3, v22')
        a(f'v_lshl_add_u32 {v(vT2)}, v23, 7, {s(sWb)}')
        a(f'v_and_b32 v2, 1, {v(vGq)}'); a(f'v_lshl_add_u32 {v(vT2)}, v2, 5, {v(vT2)}')
        a(f'v_and_b32 v2, 3, {v(vLane)}'); a(f'v_lshl_add_u32 {v(vT2)}, v2, 3, {v(vT2)}')
        a('v_lshrrev_b32 v2, 1, v22'); a(f'v_lshl_add_u32 {v(vT2)}, v2, 6, {v(vT2)}')
        a(f'v_xor_b32 {v(vT2+1)}, 64, {v(vT2)}')
        a('v_and_b32 v22, 1, v0'); a(f'v_mul_u32_u24 v22, {U_PAR}, v22'); a('v_lshrrev_b32 v2, 1, v0'); a('v_lshl_add_u32 v22, v2, 4, v22')
        a(f'v_add_u32 {v(vUW)}, {L_U+240}, v22')
        a(f's_lshr_b32 {s(sT)}, {s(sW)}, 1'); a(f's_mul_i32 {s(sT)}, {s(sT)}, {U_CH}'); a(f's_and_b32 {s(sT+1)}, {s(sW)}, 1'); a(f's_lshl_b32 {s(sT+1)}, {s(sT+1)}, 7')
        a(f's_sub_u32 {s(sT)}, {s(sT)}, {s(sT+1)}'); a(f's_add_u32 {s(sT)}, {s(sT)}, {L_U+14*16}')
        a(f'v_lshlrev_b32 v2, 1, {v(vGq)}'); a(f'v_sub_u32 v2, {v(vB)}, v2'); a(f'v_lshl_add_u32 {v(vBB)}, v2, 4, {s(sT)}')
        a(f's_lshl_b32 {s(sT)}, {s(sW)}, 9'); a(f's_add_u32 {s(sT)}, {s(sT)}, {L_U+240+8}')
        a(f'v_lshl_add_u32 {v(vUD)}, {v(vB)}, 4, {s(sT)}')
        a(f'v_lshrrev_b32 v2, 1, {v(vGq)}'); a(f'v_mul_u32_u24 v2, {U_PAR}, v2'); a(f'v_add_u32 {v(vUD)}, {v(vUD)}, v2')
        a(f'v_and_b32 v2, 1, {v(vGq)}'); a('v_lshlrev_b32 v2, 3, v2'); a(f'v_sub_u32 {v(vUD)}, {v(vUD)}, v2')
        a(f's_lshl_b32 {s(sT)}, {s(sW)}, 13'); a(f's_add_u32 {s(sT)}, {s(sT)}, {L_P}'); a(f'v_lshl_add_u32 {v(vPw)}, {v(vLane)}, 4, {s(sT)}')
        a(f's_lshl_b32 {s(sT)}, {s(sW)}, 11'); a(f's_add_u32 {s(sT)}, {s(sT)}, {L_P}'); a(f'v_lshl_add_u32 {v(vPr)}, {v(vLane)}, 4, {s(sT)}')
        a(f's_mul_i32 {s(sNonce)}, {s(sNonce)}, 0x9e3779b1'); a(f's_add_u32 {s(sNonce)}, {s(sNonce)}, 0x7f4a7c15')
        a(f's_and_b32 {s(sNonce)}, {s(sNonce)}, 0xfffffff0')
        a(f's_lshl_b32 {s(sD0)}, {s(sD1)}, 16'); a(f's_and_b32 {s(sD1)}, {s(sD1)}, 0xffff0000')
        self.st('nonce')
        if o.mode == 'auto':
            a(f's_getreg_b32 {s(sT)}, hwreg(HW_REG_XCC_ID, 0, 4)'); a(f's_or_b32 {s(sExp)}, {s(sNonce)}, {s(sT)}')
            a(f's_lshl_b32 {s(sT)}, {s(sCp)}, 2'); a(f's_add_u32 {s(sT)}, {s(sT)}, {WS_XF}')
            a(f'v_mov_b32 v22, {s(sExp)}'); a(f'v_mov_b32 v23, {s(sT)}'); a('v_cmp_eq_u32 vcc, 0, v0'); a('v_cndmask_b32 v23, -1, v23, vcc')
            a(f'buffer_store_dword v22, v23, {s(SWS,4)}, 0 offen sc1')
        if o.mode == 'auto':
            a(f's_lshl_b32 {s(sT)}, {s(sX)}, 7'); a(f's_add_u32 {s(sT)}, {s(sT)}, {WS_XF}'); a(f'v_lshl_add_u32 v23, {v(vCpl)}, 2, {s(sT)}')
        pois = ['v_mov_b32 v88, -1', 'v_mov_b32 v89, -1', 'v_mov_b32 v90, -1', 'v_mov_b32 v91, -1',
                f's_lshl_b32 {s(sT)}, {s(sCp)}, 13', f's_add_u32 {s(sT)}, {s(sT)}, {WS_Y}', f's_add_u32 {s(sT+1)}, {s(sT)}, 4096'] + \
               [(f'buffer_store_dwordx4 v[88:91], {v(vT16)}, {s(SWS,4)}, {s(sT+c)} offen sc1', 'pois') for c in range(2)]
        if o.ppos: pois = [(x[0].replace('v[88:91]', 'v[104:107]'), x[1]) if isinstance(x, tuple) else x.replace('v88', 'v104').replace('v89', 'v105').replace('v90', 'v106').replace('v91', 'v107') for x in pois]
        self.pois = pois
        if o.ppos == 0: a.add(pois)
        qld = [f's_lshl_b32 {s(sT)}, {s(sX)}, 18'] + \
              [f'buffer_load_dwordx4 {v(QR+4*r,4)}, {v(vRowA)}, {s(SQ,4)}, {s(sT)} offen offset:{1024*r}' for r in range(2)]
        self.qld = qld
        if o.qpos == 0: a.add(qld)
        self.wi = 0; self.ntr = 0
        a.add(flat(self.D(o.d0)))
        self.st('issued')
        WP, KP, VP, SS = 48, 56, 78, 94
        L = self.unpack_l(KP, KR, 11)
        L += self.stamp('kv')
        xfl = [f'buffer_load_dword v22, v23, {s(SWS,4)}, 0 offen sc1'] if o.mode == 'auto' else []
        if o.xfpos == 0: L += xfl
        if o.qpos == 1: L += qld
        L += flat(self.D(o.d0b))
        for j in range(4):
            for c in range(2):
                src = WR + 2 * c + (j >> 1)
                L.append(f'v_lshlrev_b32 {v(WP+2*j+c)}, 16, {v(src)}' if j % 2 == 0 else f'v_and_b32 {v(WP+2*j+c)}, 0xffff0000, {v(src)}')
        for t in range(8): L.append(f'v_pk_mul_f32 {v(SS+2*t,2)}, {v(WP,2)}, {v(KP+2*(t+3),2)}')
        for j in (1, 2, 3):
            for t in range(8): L.append(f'v_pk_fma_f32 {v(SS+2*t,2)}, {v(WP+2*j,2)}, {v(KP+2*(t+3-j),2)}, {v(SS+2*t,2)}')
        L += self.unpack_l(VP, VR, 8)
        if o.xfpos == 1: L += xfl
        L += flat(self.D(o.d0c))
        for t in range(8): L.append(f'v_pk_mul_f32 {v(SS+2*t,2)}, {v(SS+2*t,2)}, {v(VP+2*t,2)}')
        for c in range(2):
            for jj in range(4): L.append(f'v_cvt_pk_bf16_f32 {v(24+4*c+jj)}, {v(SS+2*(7-2*jj)+c)}, {v(SS+2*(6-2*jj)+c)}')
            L.append(f'ds_write_b128 {v(vTBw)}, {v(24+4*c,4)} offset:{128*c}')
        a.add(L)
        a('s_waitcnt lgkmcnt(0)'); a('s_barrier')
        a(f'ds_read_b128 v[32:35], {v(vTBr)}'); a(f'ds_read_b128 v[36:39], {v(vTBr)} offset:4096')
        a(f's_mov_b32 {s(sT)}, {32*4096}')
        if o.xfpos == 2: a.add(xfl)
        a.add(self.ust('' if (o.mode != 'global' and o.apf == 1) else ' sc1'))
        self.st('T')
        a.add(flat(self.W(o.dT, 99)))
        if o.iw:
            a('s_branch L_page1'); a('.p2align 12'); a('L_page1:')
        a.wait_vm('h'); a('s_barrier')
        self.st('hok')
        self.hq = []
        for i in range(8):
            self.hq += self.hrd(i)
            if i >= 1: self.hq += flat([self.hal(i - 1, r) for r in range(o.nal)])
        self.hq += flat([self.hal(7, r) for r in range(o.nal)])
        a.add(self.H(o.nh1))

    def ust(self, sc):
        return [f'buffer_store_dwordx4 v[32:35], {v(vUst)}, {s(SAR,4)}, 0 offen{sc}',
                (f'buffer_store_dwordx4 v[36:39], {v(vUst)}, {s(SAR,4)}, {s(sT)} offen{sc}', 'ust')]
    def hrd(self, i):
        L = []
        if i and i % 2 == 0: L.append(f'v_add_u32 {v(vHA)}, 1024, {v(vHA)}')
        b = (i & 1) * 128
        for k in range(0, 16, 2): L.append(f'ds_read2_b32 {v(AF+16*i+k,2)}, {v(vHA)} offset0:{b+k} offset1:{b+k+1}')
        L.append(f'ds_read_b32 {v(XF+i)}, {v(vHA)} offset:{(b+16)*4}')
        return L
    def hal(self, i, r):
        return [f'v_alignbit_b32 {v(AF+16*i+k)}, {v(AF+16*i+k+1 if k<15 else XF+i)}, {v(AF+16*i+k)}, {v(vSh)}' for k in range(4 * r, 4 * r + 4)]
    def H(self, n):
        out = self.hq[:n]; self.hq = self.hq[n:]; return out

    def front(self):
        a = self.a; o = self.o; SC = self.SC; hal = self.hal
        if o.mode == 'auto' and not self.local: a.add(self.ust(' sc1') if o.apf == 1 else [('; issued', 'ust')])
        a.add(self.gsig(1, [waitvm('ust')]))
        self.st('ack1')
        self.stop(1)
        a.add(self.H(o.nh2))
        pl = [f'buffer_load_dwordx2 v[22:23], {v(vPollF)}, {s(SAR,4)}, 0 offen sc1']
        a.add(pl)
        a.add(flat(self.W(o.dF, 99)))
        a.add(self.H(o.nh3))
        a(f's_lshl_b32 {s(sT)}, {s(sJ)}, 13'); a(f's_add_u32 {s(sT+1)}, {s(sT)}, 4096')
        a.add(self.retry(pl, [f'v_subrev_u32 v22, {s(sExp)}, v22', f'v_subrev_u32 v23, {s(sExp)}, v23', 'v_max_u32 v22, v22, v23', 'v_cmp_le_u32 vcc, 16, v22']))
        self.st('S1')
        a(f'buffer_load_dwordx4 v[88:91], {v(vT16)}, {s(SAR,4)}, {s(sT)} offen sc1')
        a(f'buffer_load_dwordx4 v[92:95], {v(vT16)}, {s(SAR,4)}, {s(sT+1)} offen sc1')
        if o.ppos == 1: a.add(self.pois)
        if o.qpos == 2: a.add(self.qld)
        a.add(flat(self.W(o.d1, 99)))
        a.add(self.H(1000))
        a(f'ds_write_b128 {v(vUW)}, v[88:91]'); a(f'ds_write_b128 {v(vUW)}, v[92:95] offset:{U_CH}')
        a('s_waitcnt lgkmcnt(0)'); a('s_barrier')
        self.st('Uld')
        ACC, BR, UD, UF = 24, 56, 96, 88
        def bread(m, r):
            par = (31 - r) & 1; add = ((31 - r) >> 1) - 14
            return (f'ds_read_b128 {v(BR+4*m,4)}, {v(vBB)} offset:{par*U_PAR+(16*m+add)*16}', 'br')
        for m in range(8): a.add([bread(m, 0)])
        pfs = f'buffer_store_dword v2, {v(vPFm)}, {s(SWS,4)}, 0 offen sc1'
        if o.ppos == 0: a(pfs)
        sc = []
        for p in range(8):
            sc += [[f's_add_u32 {s(sT)}, {s(sX)}, {p}', f's_and_b32 {s(sT)}, {s(sT)}, 7', f's_lshl_b32 {s(sKO+p)}, {s(sT)}, 11']]
        sc += [[f's_sub_u32 {s(sT)}, {s(sX)}, 6', f's_cselect_b32 {s(sT)}, {s(sX)}, {s(sT)}']]
        for p in range(6):
            g = [f's_add_u32 {s(sT+1)}, {s(sT)}, 8', f's_lshl_b32 {s(sKO+8+p)}, {s(sT+1)}, 11']
            if p < 5: g += [f's_add_u32 {s(sT)}, {s(sT)}, 1', f's_cmp_eq_u32 {s(sT)}, 6', f's_cselect_b32 {s(sT)}, 0, {s(sT)}']
            sc.append(g)
        sc += [[f's_mov_b32 {s(sL2E)}, 0x3f317218', f's_lshl_b32 {s(sW1K)}, {s(sW)}, 10']]
        self.sc = sc
        main = []
        for r in range(4):
            rnd = []
            for m in range(8):
                for i in range(8 - m):
                    C = v(ACC + 4 * (i + m), 4)
                    it = [f'v_mfma_f32_16x16x32_bf16 {C}, {v(AF+16*i+4*r,4)}, {v(BR+4*m,4)}, {"0" if (r==0 and m==0) else C}']
                    if i == 7 - m and r < 3: it.append(bread(m, r + 1))
                    if r == 3 and m == 1 and i == 0: it += [waitds('br'), 's_barrier']
                    rnd.append(it)
            if r < 3:
                al = flat([hal(i, r + 1) for i in range(8)]) if r + 1 >= o.nal else []
                for k, x in enumerate(al): rnd[k + 1].append(x)
            else:
                ud = []
                for n2 in range(2):
                    for c in range(2):
                        b = (88 if n2 == 0 else 120) + 4 * c; sr = UD + 4 * n2 + 2 * c
                        ud += [f'v_and_b32 {v(b+0)}, 0xffff0000, {v(sr+1)}', f'v_lshlrev_b32 {v(b+1)}, 16, {v(sr+1)}',
                               f'v_and_b32 {v(b+2)}, 0xffff0000, {v(sr)}', f'v_lshlrev_b32 {v(b+3)}, 16, {v(sr)}']
                for k, x in enumerate(ud): rnd[k + 10].append(x)
                pos = [sum(8 - mm for mm in range(m)) for m in range(8)]
                for N in range(5):
                    rnd[min(max(pos[N] + 4, 11), 35)].append((f'ds_write_b128 {v(vPw)}, {v(ACC+4*N,4)} offset:{N*1024}', 'pw'))
            main += rnd
        for n2 in range(2):
            for c in range(2): main[40 + 2 * n2 + c].append(f'ds_read_b64 {v(UD+4*n2+2*c,2)}, {v(vUD)} offset:{c*U_CH+n2*256}')
        pfl = [f's_mov_b32 {s(sT+1)}, {WS_PF}', f'buffer_load_dword v19, {v(vT16)}, {s(SWS,4)}, {s(sT+1)} offen sc1']
        if o.ppos: main[o.ppb] += [waitvm('pois'), 's_barrier', pfs]
        if o.pfpos < 144: main[o.pfpos] += pfl
        if o.qpos == 3: main[2] += self.qld
        a.add(interleave(main, self.W(o.d2, o.lag2), start=0, end=o.d2end))
        self.st('convmf')
        a(f's_lshl_b32 {s(sT)}, {s(sCp)}, 13'); a(f's_lshl_b32 {s(sT+1)}, {s(sW)}, 11'); a(f's_add_u32 {s(sT)}, {s(sT)}, {s(sT+1)}'); a(f's_add_u32 {s(sT)}, {s(sT)}, {WS_Y}')
        a(f'v_lshlrev_b32 v22, 4, {v(vLane)}')
        for N in range(5, 8): a(f'ds_write_b128 {v(vPw)}, {v(ACC+4*N,4)} offset:{N*1024}')
        a('s_waitcnt lgkmcnt(0)'); a('s_barrier')
        for n2 in range(2):
            for w in range(4): a(f'ds_read_b128 {v(BR+16*n2+4*w,4)}, {v(vPr)} offset:{w*8192+n2*1024}')
        for n2 in range(2):
            U0 = 88 if n2 == 0 else 120
            for c in range(2):
                p = BR + 16 * n2 + 8 * c; b = U0 + 4 * c
                for r in range(4): a(f'v_fma_f32 {v(b+r)}, {v(b+r)}, {s(sD0+c)}, {v(p+r)}')
                for r in range(0, 4, 2): a(f'v_pk_add_f32 {v(b+r,2)}, {v(b+r,2)}, {v(p+4+r,2)}')
            for r in range(4): a(f'v_cvt_pk_bf16_f32 {v(128+4*n2+r)}, {v(U0+r)}, {v(U0+4+r)}')
            for r in range(4): a(f'v_min_u32 {v(128+4*n2+r)}, -2, {v(128+4*n2+r)}')
            a(f'buffer_store_dwordx4 {v(128+4*n2,4)}, v22, {s(SWS,4)}, {s(sT)} offen offset:{n2*1024} sc1')
        self.st('conv')
        self.stop(2)
        if o.pfpos >= 144: a.add(pfl)
        a.add(flat(self.W(o.d3)))
        self.unpack(RX, QR, 8)
        self.ln_stats(RX, RT)
        self.ln_apply(RN, RX)
        a.add(self.retry(pfl, self.ftest(19)))
        if o.apos == 0:
            a.add(flat(self.sc)); self.ffn_addrs()
        a(f's_lshl_b32 {s(sT)}, {s(sX)}, 10'); a(f's_and_b32 {s(sT+1)}, {s(sMem)}, 12'); a(f's_lshl_b32 {s(sT+1)}, {s(sT+1)}, 6'); a(f's_add_u32 {s(sT)}, {s(sT)}, {s(sT+1)}')
        a(f's_lshl_b32 {s(sT+1)}, {s(sGb)}, 7'); a(f's_add_u32 {s(sT)}, {s(sT)}, {s(sT+1)}')
        a(f's_and_b32 {s(sT+1)}, {s(sMem)}, 3'); a(f's_lshl_b32 {s(sT+1)}, {s(sT+1)}, 5'); a(f's_add_u32 {s(sT)}, {s(sT)}, {s(sT+1)}')
        a(f's_add_u32 {s(sT+2)}, {s(sT)}, {WS_Y}')
        a('v_lshrrev_b32 v104, 1, v0'); a('v_and_b32 v105, 1, v0')
        a('v_lshlrev_b32 v106, 13, v104'); a('v_lshl_add_u32 v106, v105, 4, v106'); a(f'v_add_u32 v106, {s(sT+2)}, v106'); a(f'v_add_u32 v107, {128*8192}, v106')
        a('v_lshlrev_b32 v105, 12, v105'); a('v_lshl_add_u32 v105, v104, 2, v105'); a(f'v_add_u32 v105, {L_YL}, v105')
        a(f's_lshl_b32 {s(sT)}, {s(sW)}, 11'); a(f's_add_u32 {s(sT)}, {s(sT)}, {L_YL}'); a(f'v_lshl_add_u32 v104, {v(vLane)}, 4, {s(sT)}')
        a.add(flat(self.W(o.d3b)))
        gl = [f'buffer_load_dwordx4 v[88:91], v106, {s(SWS,4)}, 0 offen sc1', f'buffer_load_dwordx4 v[92:95], v107, {s(SWS,4)}, 0 offen sc1']
        a('s_barrier')
        self.st('S2')
        a.add(gl)
        a.add(flat(self.W(o.d4)))
        if o.apos == 1:
            a.add(flat(self.sc)); self.ffn_addrs()
        a.add(flat(self.W(o.d4b)))
        a.add(self.retry(gl, ['v_max3_u32 v2, v88, v89, v90', 'v_max3_u32 v23, v91, v92, v93', 'v_max3_u32 v2, v2, v94, v95', 'v_max_u32 v2, v2, v23',
                              'v_cmp_eq_u32 vcc, -1, v2']))
        self.st('Yok')
        for e in range(2):
            for k in range(4): a(f'ds_write_b32 v105, {v(88+4*e+k)} offset:{k*1024+e*512}')
        a.add(flat(self.W(o.d5)))
        a('s_waitcnt lgkmcnt(0)'); a('s_barrier')
        a(f'ds_read_b128 {v(RST+8,4)}, v104'); a(f'ds_read_b128 {v(RST+12,4)}, v104 offset:1024')
        self.st('Yld')

    def ffn_addrs(self):
        a = self.a
        a(f's_lshl_b32 {s(sT)}, {s(sGb)}, 8'); a(f's_add_u32 {s(sT)}, {s(sT)}, {AR_FG}')
        a(f'v_lshl_add_u32 {v(vPollF)}, {v(vLane)}, 2, {s(sT)}')
        a(f's_lshl_b32 {s(sT+1)}, {s(sMem)}, 2'); a(f's_add_u32 {s(sT+1)}, {s(sT+1)}, {s(sW)}')
        a(f'v_cmp_eq_u32 vcc, {s(sT+1)}, {v(vLane)}'); a(f'v_cndmask_b32 {v(vMyF)}, -1, {v(vPollF)}, vcc')
        a(f's_lshl_b32 {s(sT)}, {s(sW)}, 2'); a(f'v_add_u32 v20, {s(sT)}, {v(vGq)}')
        a(f'v_xor_b32 v21, v20, {v(vB)}'); a('v_lshlrev_b32 v21, 4, v21'); a(f'v_lshl_add_u32 {v(vXD)}, v20, 10, v21')
        a(f's_lshl_b32 {s(sT)}, {s(sGb)}, 17'); a(f'v_add_u32 {v(vXD)}, {s(sT)}, {v(vXD)}')
        a(f'v_and_b32 v20, 31, {v(vLane)}'); a(f'v_lshrrev_b32 v21, 5, {v(vLane)}')
        a(f'v_xor_b32 v22, v21, {v(vB)}'); a('v_lshlrev_b32 v22, 4, v22'); a(f'v_lshl_add_u32 v22, v20, 8, v22')
        for e in range(8):
            a(f's_lshr_b32 {s(sT)}, {s(sKO+e)}, 6'); a(f'v_xor_b32 {v(XA+e)}, {s(sT)}, v22')
        a(f's_mul_i32 {s(sT+2)}, {s(sGb)}, {4*HF_TT}'); a(f's_add_u32 {s(sT+2)}, {s(sT+2)}, {AR_HF}')
        a(f's_lshl_b32 {s(sT)}, {s(sMem)}, 13'); a(f's_lshl_b32 {s(sT+1)}, {s(sW)}, 11'); a(f's_add_u32 {s(sT)}, {s(sT)}, {s(sT+1)}'); a(f's_add_u32 {s(sT)}, {s(sT)}, {s(sT+2)}')
        a(f's_cmp_ge_u32 {s(sMem)}, 14'); a(f's_cselect_b32 {s(sT)}, 0x40000000, {s(sT)}')
        a(f'v_lshl_add_u32 {v(vHS)}, {v(vLane)}, 4, {s(sT)}')
        a(f's_lshr_b32 {s(sT)}, {s(sMem)}, 3'); a(f's_mul_i32 {s(sT)}, {s(sT)}, {2*HF_TT}'); a(f's_mul_i32 {s(sT+1)}, {s(sW)}, 28672'); a(f's_add_u32 {s(sT)}, {s(sT)}, {s(sT+1)}')
        a(f's_add_u32 {s(sT)}, {s(sT)}, {s(sT+2)}')
        a(f'v_lshl_add_u32 {v(vHL)}, {v(vLane)}, 4, {s(sT)}'); a(f'v_add_u32 {v(vHL+1)}, {HF_TT}, {v(vHL)}')
        a(f'v_and_b32 v22, 7, {v(vLane)}'); a('v_xor_b32 v22, v22, v21'); a('v_lshlrev_b32 v22, 4, v22'); a('v_lshl_add_u32 v22, v20, 8, v22')
        a(f's_lshl_b32 {s(sT)}, {s(sW)}, 13'); a(f's_add_u32 {s(sT)}, {s(sT)}, 65536'); a(f'v_add_u32 {v(vRW)}, {s(sT)}, v22')
        a('v_lshrrev_b32 v20, 3, v0'); a('v_and_b32 v21, 7, v0'); a('v_and_b32 v22, 7, v20'); a('v_lshlrev_b32 v23, 1, v21'); a('v_xor_b32 v22, v22, v23')
        a('v_lshlrev_b32 v22, 4, v22'); a(f'v_lshl_add_u32 {v(vRR)}, v20, 8, v22'); a(f'v_add_u32 {v(vRR)}, 65536, {v(vRR)}')
        a(f's_lshr_b32 {s(sT)}, {s(sJ)}, 3'); a(f's_lshl_b32 {s(sT)}, {s(sT)}, 16'); a(f's_and_b32 {s(sT+1)}, {s(sMem)}, 7'); a(f's_lshl_b32 {s(sT+1)}, {s(sT+1)}, 7')
        a(f's_add_u32 {s(sT)}, {s(sT)}, {s(sT+1)}'); a('v_lshlrev_b32 v20, 10, v20'); a('v_lshl_add_u32 v20, v21, 4, v20'); a(f'v_add_u32 {v(vFO)}, {s(sT)}, v20')
        a(f'v_bfe_u32 v20, {v(vLane)}, 2, 2'); a(f'v_lshrrev_b32 v21, 5, {v(vLane)}'); a('v_lshl_add_u32 v21, v21, 3, v20')
        a(f'v_xor_b32 v22, {s(sW)}, v20'); a('v_lshlrev_b32 v22, 6, v22'); a(f'v_lshl_add_u32 {v(vT1)}, v21, 8, v22')
        a(f'v_and_b32 v22, 1, {v(vGq)}'); a(f'v_lshl_add_u32 {v(vT1)}, v22, 5, {v(vT1)}')
        a(f'v_and_b32 v22, 1, {v(vLane)}'); a(f'v_lshl_add_u32 {v(vT1)}, v22, 4, {v(vT1)}')
        a(f'v_bfe_u32 v22, {v(vLane)}, 1, 1'); a(f'v_lshl_add_u32 {v(vT1)}, v22, 3, {v(vT1)}')
        a(f'v_add_u32 {v(vT1+1)}, 0x10000, {v(vT1)}')
        a(f's_lshl_b32 {s(sT)}, {s(sRow)}, 3'); a(f's_add_u32 {s(sT)}, {s(sT)}, {AR_ST}')
        a(f'v_lshl_add_u32 v22, {v(vGq)}, 3, {s(sT)}'); a(f'v_and_b32 v21, 47, {v(vLane)}'); a('v_cmp_eq_u32 vcc, 0, v21'); a('v_cndmask_b32 v19, -1, v22, vcc')

    def r_tail(self, layer):
        a = self.a; SC = self.SC
        for i in range(8): a(f'v_pk_fma_f32 {v(RX+2*i,2)}, {v(RN+2*i,2)}, {v(RY+2*i,2)}, {v(RX+2*i,2)}')
        self.ln_stats(RX, RT, True)
        if layer == 1: a(f'buffer_store_dwordx2 {v(RT+2,2)}, v19, {s(SAR,4)}, 0 offen{SC}')
        for r in range(2):
            a.add(self.ln_apply_l(RN, RX, r)); a.add(self.pack_l(80 + 4 * r, RN + 8 * r, 4))
            a(f'buffer_store_dwordx4 {v(80+4*r,4)}, {v(vRowA)}, {s(SAR,4)}, 0 offen offset:{1024*r}{SC}', tag='xst')
        if layer == 0: self.pack(RST, RX, 8)

    def ffn(self, layer):
        a = self.a; o = self.o; SC = self.SC
        P = lambda k: getattr(o, f'{k}{layer}')
        order = [0, 2, 1, 3]
        XB = 56; NB = 6; LEAD = 5; ET = 80; PK = 88
        HB = 104; NH = 8; AC2 = [[24, 56], [40, 72]]
        phA, phB = (4, 5) if layer == 0 else (8, 9)
        hs = {'s': ' sc1', 'p': '', 'n': ' nt'}[P('hm')] if self.local else ' sc1'
        def epi(sl):
            A0 = 24 + 16 * (sl & 1); ops = []; cv = {}; ml = {}
            for e in range(16):
                t = ET + (e & 7); b = len(ops)
                ops.append((f'v_exp_f32 {v(t)}, -{v(A0+e)}', [cv[(e - 8) // 2]] if e >= 8 else [], 0))
                ops.append((f'v_add_f32 {v(t)}, 1.0, {v(t)}', [b], 0))
                ops.append((f'v_rcp_f32 {v(t)}, {v(t)}', [b + 1], 0))
                ops.append((f'v_mul_f32 {v(t)}, {v(t)}, {v(A0+e)}', [b + 2], 0)); ml[e] = b + 3
                if e & 1:
                    cv[e // 2] = len(ops)
                    ops.append((f'v_cvt_pk_bf16_f32 {v(PK+e//2)}, {v(t-1)}, {v(t)}', [ml[e - 1], ml[e]], 0))
                if e % 8 == 7:
                    h = e // 8
                    ops.append(([f's_mov_b32 {s(sT+3)}, {order[sl]*HF_TT}',
                                 (f'buffer_store_dwordx4 {v(PK+4*h,4)}, {v(vHS)}, {s(SAR,4)}, {s(sT+3)} offen offset:{h*1024}{hs}', f'hs{sl}')],
                                [cv[4 * h + k] for k in range(4)], 1))
            return ops
        def hld(i):
            hf, ks = divmod(i, 28)
            return (f'buffer_load_dwordx4 {v(HB+4*(i%NH),4)}, {v(vHL+hf)}, {s(SAR,4)}, {s(sKO+(ks>>1))} offen offset:{(ks&1)*1024} sc1', f'h{i}')
        def ocheck():
            Ls = self.lab('slow'); Lr = self.lab('back')
            self.ool([f'{Ls}:'] + self.gwait() + [f's_branch {Lr}'])
            t0, t1 = self.ftest(2)
            return [waitvm('pl'), t0, t1, f's_cbranch_vccnz {Ls}', f'{Lr}:']
        gl = [(self.gload()[0], 'pl')]
        res = []
        if layer == 1:
            res += [f'v_lshrrev_b32 v20, 10, {v(vFO)}', 'v_lshlrev_b32 v20, 3, v20', f's_mov_b32 {s(sT+2)}, {AR_ST}']
            for hf in range(2):
                res += [f'buffer_load_dwordx2 {v(RST+8+2*hf,2)}, v20, {s(SAR,4)}, {s(sT+2)} offen offset:{hf*256} sc1', 1]
            for hf in range(2):
                res += [f's_mov_b32 {s(sT+2)}, {hf*32768}', f'buffer_load_dwordx4 {v(RST+4*hf,4)}, {v(vFO)}, {s(SAR,4)}, {s(sT+2)} offen sc1', 1]
            res += ['v_or_b32 v21, s2, v0', 'v_cmp_eq_u32 vcc, 0, v21', f'v_mov_b32 v20, {s(sNonce)}', 1, 'v_cndmask_b32 v21, -1, v21, vcc',
                    f'buffer_store_dword v20, v21, {s(SWS,4)}, 0 offen sc1']
        Lskip = self.lab('g1skip'); Ljoin = self.lab('g2')
        a(f's_cmp_ge_u32 {s(sMem)}, 14'); a(f's_cbranch_scc1 {Lskip}')
        a.add([forget('x'), forget('h'), forget('r'), forget('pl')])
        xd = []
        for sl, tt in enumerate(order):
            for kq in range(4):
                for b in range(2):
                    g = [f's_add_u32 m0, {s(sW1K)}, {sl*32768+kq*8192+b*4096-kq*256}']
                    if kq == 0: g.append(f's_mov_b32 {s(sT+b)}, {tt*32768+b*16384}')
                    g.append((f'buffer_load_dwordx4 {v(vXD)}, {s(SAR,4)}, {s(sT+b)} offen offset:{kq*256} sc1 lds', f'x{sl}_{kq}'))
                    xd.append(g)
        bar = {(0, 0): 'x0_0', (0, 1): 'x0_1', (0, 2): 'x0_3', (1, 0): 'x1_1', (1, 2): 'x2_1', (2, 2): 'x3_3'}
        def rd(i):
            sl, ks = divmod(i, 32)
            pre = [waitvm(bar[(sl, ks // 8)]), 's_barrier'] if ks % 8 == 0 and (sl, ks // 8) in bar else []
            L = pre + [(f'ds_read_b128 {v(XB+4*(i%NB),4)}, {v(XA+(ks&7))} offset:{(sl&1)*32768+(ks>>3)*8192}', f'r{i}')]
            if sl in (1, 3) and ks >= 24: L.append(f'v_xor_b32 {v(XA+(ks&7))}, 0x10000, {v(XA+(ks&7))}')
            return L
        nb = P('bub'); b2 = 128 + nb
        Gp = []
        for i in range(128):
            sl, ks = divmod(i, 32); C = v(24 + 16 * (sl & 1), 16)
            Gp.append(Gap(f'v_mfma_f32_32x32x16_bf16 {C}, {ac(4*ks,4)}, {v(XB+4*(i%NB),4)}, {"0" if ks==0 else C}', 24))
        Gp += [Gap(None, 32) for _ in range(nb)]
        for i in range(56):
            hf, ks = divmod(i, 28)
            for dt in range(2):
                C = v(AC2[hf][dt], 16)
                Gp.append(Gap(f'v_mfma_f32_32x32x16_bf16 {C}, {self.w2reg(ks,dt)}, {v(HB+4*(i%NH),4)}, {"0" if ks==0 else C}', 24))
        n0 = o.xd0
        a.add(flat(xd[:n0]))
        for i in range(LEAD): a.add(rd(i))
        self.st(f'g1go{layer}')
        for i in range(128):
            if i % 2 == 0 and i + 2 < 128: Gp[i].s0.append(waitds(f'r{i+2}'))
            if i == 126: Gp[i].s0.append(waitds('r127'))
            if i + LEAD < 128: place(Gp, rd(i + LEAD), i, force=True)
        g = 1
        for k in range(n0, 32):
            while Gp[g].s0 and g > 33: g += 1
            place(Gp, xd[k], g, force=True); g += 2 if (k < 24 or layer == 0) else o.xp
        wi0 = self.wi
        if layer == 0:
            nw = 88 - self.wi; w = self.D(nw)
            for k in range(nw):
                r = wi0 + k - 64
                g = max(o.wb0 + (k * (o.wb1 - o.wb0)) // nw, g, 0 if r < 8 else (45 if r < 16 else 77))
                while Gp[g].s0: g += 1
                g = place(Gp, w[k], g, force=True) + 1
        if self.local and layer == 1 and o.wba >= 0:
            L = self.lab('wb'); Lr = self.lab('wbr')
            self.ool([f'{L}:', 'buffer_wbl2 sc1', f's_branch {Lr}'])
            Gp[o.wba].val += [f's_or_b32 {s(sT+2)}, {s(sJ)}, {s(sW)}', f's_cbranch_scc0 {L}', f'{Lr}:']; Gp[o.wba].left -= 14
        e0 = place_dag_fit(Gp, epi(0), 32 + o.es, 65)
        e1 = place_dag_fit(Gp, epi(1), 64 + o.es, P('dl'))
        if res: place(Gp, res, max(o.rsp, o.wba + 1))
        sg = self.gsig(phA, [waitvm('hs1')])
        place(Gp, sg[:2], e1 + 1)
        fa = place(Gp, sg[2:], e1 + P('fa'))
        pa = place(Gp, gl, fa + P('pa'))
        ca = place(Gp, ocheck() + self.stamp(f'A{layer}'), pa + P('ca'))
        assert ca < b2 - 1, (ca, b2)
        hp = []
        for i in range(56):
            g = max(ca + 1 + 2 * i, b2 + 2 * (i - NH) + 1)
            if g >= b2 and (g - b2) % 2 == 0: g += 1
            assert g < b2 + 2 * i - 1, 'H load later than its use'
            hp.append(g)
        for i in range(56):
            Gp[b2 + 2 * i - 1].s0.insert(0, waitvm(f'h{i}'))
        for i in range(56): place(Gp, [hld(i)], hp[i], force=True)
        e2 = place_dag_fit(Gp, epi(2), 96 + o.es, b2)
        fp = []
        if layer == 0:
            fp = [f'v_mov_b32 {v(136+k)}, -1' for k in range(4)] + \
                 [(f'buffer_store_dwordx4 v[136:139], {v(vRowA)}, {s(SAR,4)}, 0 offen offset:{1024*r}{SC}', 'fp') for r in range(2)]
        e3, _ = place_dag(Gp, epi(3), max(128 + o.es3, e2 + 1))
        gf = place(Gp, fp, b2) + 14 if fp else 0
        sg = self.gsig(phB, [waitvm('hs3')] + ([waitvm('fp')] if fp else []))
        place(Gp, sg[:2], max(ca + 1, b2))
        fb = place(Gp, sg[2:], max(e3 + P('fb'), b2 + 2, gf))
        cb = hp[28] - 1
        pb = place(Gp, gl, max(fb + 1, min(fb + P('pb'), cb - P('cb'))))
        assert pb < cb
        ck = ocheck() + self.stamp(f'B{layer}')
        Gp[cb].val += ck; Gp[cb].left -= 22
        if o.v: print(f'layer {layer}: e0 {e0} e1 {e1} fa {fa} pa {pa} ca {ca} e2 {e2} b2 {b2} e3 {e3} fb {fb} pb {pb} cb {cb} lead {sum(g < b2 for g in hp)}')
        if layer == 0:
            w2b = [f's_mul_i32 {s(sT+2)}, {s(sW)}, {32768-8192}', f'v_subrev_u32 v9, {s(sT+2)}, v9', f'v_subrev_u32 v10, {s(sT+2)}, v10',
                   f'v_add_u32 v20, {L_AUX}, v9', f'v_add_u32 v21, {L_AUX}, v10', waitvm('w87')]
            for k in range(12):
                for dt in range(2):
                    for u in range(2):
                        ad = 20 + dt if k < 4 else 9 + dt
                        off = (k & 3) * 2048 + u * 512 + (32768 if k >= 8 else 0)
                        w2b.append((f'ds_read_b64_tr_b16 {self.w2reg(16+k,dt,2*u,2)}, {v(ad)} offset:{off}', 'tb'))
            g = place(Gp, w2b, b2 + o.trb0)
            g = place(Gp, [3, waitds('tb')], g)
            assert g < b2 + 31
        def red(hf):
            Wr = []
            for dt in range(2):
                for q in range(4):
                    c = (8 * dt + 2 * q) * 16
                    if c: Wr += [f'v_xor_b32 v20, {c}, {v(vRW)}', (f'ds_write_b128 v20, {v(AC2[hf][dt]+4*q,4)} offset:{hf*32768}', 'rw')]
                    else: Wr += [f'v_xor_b32 v21, 16, {v(vRR)}', (f'ds_write_b128 {v(vRW)}, {v(AC2[hf][dt]+4*q,4)} offset:{hf*32768}', 'rw')]
            Sy = [waitds('rw'), 's_barrier']
            R = lambda w, e: AC2[0][w >> 1] + 8 * (w & 1) + e
            Rd = [(f'ds_read_b128 {v(R(w,4*e),4)}, {v(vRR) if e==0 else "v21"} offset:{hf*32768+w*8192}', 'rr') for w in range(4) for e in range(2)]
            X3 = 88 if hf == 0 else 136
            L = []
            if hf == 0:
                for w in (1, 2, 3):
                    for e in range(8): L.append(f'v_add_f32 {v(R(0,e))}, {v(R(0,e))}, {v(R(w,e))}')
                if layer == 1:
                    for e in range(8): L.append(f'v_fma_f32 {v(R(0,e))}, {v(R(0,e))}, {s(sL2E)}, {v(X3+e)}')
            else:
                for w in (1, 2, 3):
                    for e in range(0, 8, 2): L.append(f'v_pk_add_f32 {v(R(0,e),2)}, {v(R(0,e),2)}, {v(R(w,e),2)}')
                if layer == 1:
                    for e in range(0, 8, 2): L.append(f'v_pk_fma_f32 {v(R(0,e),2)}, {v(R(0,e),2)}, {s(sL2E,2)}, {v(X3+e,2)} op_sel_hi:[1,0,1]')
            for i in range(4): L.append(f'v_cvt_pk_bf16_f32 {v(R(1,i))}, {v(R(0,2*i))}, {v(R(0,2*i+1))}')
            if layer == 0:
                for i in range(4): L.append(f'v_min_u32 {v(R(1,i))}, -2, {v(R(1,i))}')
            St = [f's_mov_b32 {s(sT)}, {hf*32768}',
                  (f'buffer_store_dwordx4 {v(R(1,0),4)}, {v(vFO)}, {s(SAR if layer==0 else SO,4)}, {s(sT)} offen{SC if layer==0 else " sc1"}', 'fst')]
            return Wr, Sy, Rd, L, St
        if layer == 1:
            x3 = []
            for hf in range(2):
                X3 = 88 if hf == 0 else 136; st = RST + 8 + 2 * hf
                x3 += [f'v_rcp_f32 {v(st)}, {v(st)}'] + self.unpack_l(X3, RST + 4 * hf, 4) + [f'v_mul_f32 {v(st+1)}, -{v(st+1)}, {v(st)}']
                x3 += [f'v_fma_f32 {v(X3+e)}, {v(X3+e)}, {v(st)}, {v(st+1)}' for e in range(8)]
            g = place(Gp, x3, max(e3 + 2, b2))
            assert g < b2 + 56
        Wr, Sy, Rd, Ar, St = red(0)
        g = place(Gp, Wr + [o.rb] + Sy + Rd + [o.rr, waitds('rr')] + Ar, b2 + 56 + o.rs)
        g = place(Gp, St, max(g + 1, hp[55] + 1 if layer == 1 else 0))
        if o.v: print('  red0 store at', g - b2, ' overflow', [sum(max(0, -x.left) for x in Gp[k:k+32]) for k in (0, 32, 64, 96)], sum(max(0, -x.left) for x in Gp[b2:b2+56]), sum(max(0, -x.left) for x in Gp[b2+56:]))
        for i, x in enumerate(Gp):
            if i == b2:
                a(f'{Ljoin}:'); self.st(f'g2go{layer}')
            a.add(x.emit())
            if i < 128 and i % 32 == 31: self.st(f'g1s{i//32}_{layer}')
            if i == b2 + 55: self.st(f'g2h0_{layer}')
        self.st(f'g2mf{layer}')
        a.add(flat(list(red(1))))
        idle = [f'{Lskip}:'] + self.gsig(phA, [])
        if layer == 0:
            self.wi = wi0
            idle += flat(self.D(88 - wi0))
        idle += [x for x in res if not isinstance(x, int)]
        idle += self.gwait()
        idle += [hld(i) for i in range(56) if hp[i] < b2]
        idle += ['s_waitcnt vmcnt(0)', f's_branch {Ljoin}']
        self.ool(idle)

    def body(self):
        a = self.a; o = self.o
        self.front()
        self.unpack(RY, RST + 8, 8)
        self.r_tail(0)
        self.st('R1')
        a.add(flat(self.W(64)))
        a.add(self.gsig(3, [waitvm('xst')]))
        self.st('ack3')
        self.stop(3)
        if o.ipf:
            L = self.lab('ipf'); Lr = self.lab('ipfr')
            pf = [f'{L}:'] + self.gsig(4, []) + [f's_sub_u32 {s(sExp)}, {s(sExp)}, 1',
                  f's_lshl_b32 {s(sT)}, {s(sGb)}, 1', f's_add_u32 {s(sT)}, {s(sT)}, {s(sMem)}', f's_sub_u32 {s(sT)}, {s(sT)}, 14', f's_lshl_b32 {s(sT)}, {s(sT)}, 8',
                  f's_mul_i32 {s(sT+1)}, {s(sW)}, {448*1024}', f's_add_u32 {s(sT)}, {s(sT)}, {s(sT+1)}',
                  f'v_lshrrev_b32 v20, 1, {v(vLane)}', f'v_and_b32 v21, 1, {v(vLane)}', f'v_lshl_add_u32 v20, v20, 10, {s(sT)}', 'v_lshl_add_u32 v20, v21, 7, v20']
            for p in range(6):
                pf += [f's_lshl_b32 {s(sT)}, {s(sKO+8+p)}, 4', f'buffer_load_dword {v(104+p)}, v20, {s(SW2,4)}, {s(sT)} offen']
            self.ool(pf + [f's_branch {Lr}'])
            a(f's_cmp_ge_u32 {s(sMem)}, 14'); a(f's_cbranch_scc1 {L}'); a(f'{Lr}:')
        a('s_waitcnt vmcnt(0)'); a('s_barrier')
        self.st('w1ok')
        a.add(self.gload())
        for ks in range(32):
            for u in range(2):
                a(f'ds_read_b64_tr_b16 {ac(4*ks+2*u,2)}, {v(vT1 if ks<16 else vT1+1)} offset:{(ks&15)*4096+u*1024}')
        a.add(self.gcheck())
        a('s_waitcnt lgkmcnt(0)'); a('s_barrier')
        self.st('S3')
        self.ffn(0)
        self.st('ack5')
        self.stop(5)
        self.unpack(RX, RST, 8); self.unpack(RY, RST + 8, 8)
        fl = [f'buffer_load_dwordx4 {v(80+4*r,4)}, {v(vRowA)}, {s(SAR,4)}, 0 offen offset:{1024*r} sc1' for r in range(2)]
        a.add(self.spin(fl, ['v_max3_u32 v2, v80, v81, v82', 'v_max3_u32 v23, v84, v85, v86', 'v_max3_u32 v2, v2, v83, v87', 'v_max_u32 v2, v2, v23',
                             'v_cmp_eq_u32 vcc, -1, v2'])[0])
        self.st('S5')
        self.unpack(RN, 80, 8)
        for i in range(8): a(f'v_pk_fma_f32 {v(RX+2*i,2)}, {v(RN+2*i,2)}, {s(sL2E,2)}, {v(RX+2*i,2)} op_sel_hi:[1,0,1]')
        self.ln_stats(RX, RT); self.ln_apply(RN, RX)
        self.r_tail(1)
        self.st('R2')
        a.add(self.gsig(7, [waitvm('xst')]))
        self.stop(6)
        a.add(self.gwait())
        self.st('S6')
        self.ffn(1)

    def place_hops(self, body):
        import subprocess, re, os, tempfile
        lines = body.split('\n')
        i1 = lines.index('L_page1:'); ie = lines.index('L_cpf_end:')
        isins = lambda l: l.startswith('    ') and not l.strip().startswith(';')
        labs = ''.join(f'L_hop_{k}:\n' for k in range(1, 5))
        src = f'.amdgcn_target "amdgcn-amd-amdhsa--gfx950"\n.text\n{NAME}_kernel:\n' + body + labs
        d = tempfile.mkdtemp()
        open(d + '/x.s', 'w').write(src)
        subprocess.run(['clang', '-x', 'assembler', '-target', 'amdgcn-amd-amdhsa', '-mcpu=gfx950', '-c', d + '/x.s', '-o', d + '/x.o'], check=True)
        dis = subprocess.run(['llvm-objdump', '-d', '--mcpu=gfx950', d + '/x.o'], capture_output=True, text=True).stdout
        ent = [(int(m.group(1), 16), len(m.group(2).split()) * 4) for m in re.finditer(r'// ([0-9A-F]{12}): ([0-9A-F ]+)', dis)]
        n0 = sum(isins(l) for l in lines[:i1])
        assert ent[n0 - 1][0] + 0x400 < 0x1000, 'prologue too long for page 0'
        sizes = [sz for ad, sz in ent if ad >= 0x1000]
        out = lines[:i1 + 1]; off = 0; k = 0; pos = []; j = 0
        for l in lines[i1 + 1:ie]:
            if isins(l):
                if off >= 4096 * k:
                    k += 1; pos.append(len(out)); out.append(None); off += 4
                off += sizes[j]; j += 1
            out.append(l)
        assert 4 <= k <= 8
        for h, p in enumerate(pos):
            nxt = f'L_hop_{h+5}' if h + 5 <= k else 'L_hop_back'
            out[p] = f'L_hop_{h+1}:\n    s_cbranch_execz {nxt}'
        return '\n'.join(out + lines[ie:])

    def gen(self):
        o = self.o
        self.prologue()
        parts = []
        if o.mode == 'auto':
            a = self.a
            ld = [f'buffer_load_dword v22, v23, {s(SWS,4)}, 0 offen sc1']
            t1 = [f'v_xor_b32 v22, {s(sExp)}, v22', 'v_cmp_ne_u32 vcc, 0, v22']
            self.ool(['L_place:', 'L_place_l:', 'v_cmp_le_u32 vcc, 16, v22', 's_cbranch_vccz L_global'] + ld +
                     ['s_waitcnt vmcnt(0)'] + t1 + ['s_cbranch_vccz L_local', f's_sub_u32 {s(sCnt)}, {s(sCnt)}, 1', 's_cbranch_scc0 L_place_l', f's_mov_b32 {s(sCnt)}, 0', 's_branch L_global'])
            a.add(t1 + ['s_cbranch_vccnz L_place', 'L_local:'])
            wi, ntr, hq = self.wi, self.ntr, list(self.hq)
            self.local = True; self.body()
            main = self.a; segs_l = self.segs; self.segs = []
            self.a = Asm(); self.a('L_global:'); self.a('s_waitcnt vmcnt(0) lgkmcnt(0)')
            for i in range(wi): self.a('; issued', tag=f'w{i}')
            for i in range(ntr): self.a('; issued', tag=f't{i}')
            self.wi, self.ntr, self.hq = wi, ntr, hq
            self.local = False; self.body(); self.a('s_branch L_fin')
            glob = [self.a] + self.segs
        else:
            self.local = (o.mode == 'local')
            self.body()
            main = self.a; segs_l = self.segs; glob = []
        a = main
        self.a = a
        a('L_fin:')
        if o.pad:
            a('s_waitcnt vmcnt(0)')
            self.st('end')
            a('s_waitcnt lgkmcnt(0)')
            a(f's_add_u32 s72, {"s88" if o.padstamp else "s78"}, {o.pad*100}')
            a('L_padl:'); a('s_memrealtime s[74:75]'); a('s_waitcnt lgkmcnt(0)'); a('s_sub_u32 s74, s74, s72'); a('s_cmp_lt_i32 s74, 0'); a('s_cbranch_scc1 L_padl')
        if o.diag:
            a('s_waitcnt vmcnt(0)')
            self.st('end')
            a('s_memrealtime s[74:75]')
            a('s_waitcnt lgkmcnt(0)')
            a('v_mov_b32 v20, 0')
            for n, i in self.stn.items(): a(f'v_writelane_b32 v20, {s(STAMPS[i])}, {i}')
            a('v_writelane_b32 v20, s78, 30'); a('v_writelane_b32 v20, s74, 31')
            a(f's_lshl_b32 {s(sT)}, s2, 2'); a(f's_add_u32 {s(sT)}, {s(sT)}, {s(sW)}'); a(f's_lshl_b32 {s(sT)}, {s(sT)}, 7'); a(f's_add_u32 {s(sT)}, {s(sT)}, {WS_DIAG}')
            a(f'v_lshlrev_b32 v21, 2, {v(vLane)}'); a('s_lshr_b64 exec, -1, 32')
            a(f'buffer_store_dword v20, v21, {s(SWS,4)}, {s(sT)} offen')
        a('L_end:')
        a('s_endpgm')
        body = ''; n = 0; npad = 0
        for k, x in enumerate([main] + segs_l + [None] + glob):
            if x is None:
                body += 'L_cpf_end:\n'; continue
            t, st = finalize(x); body += t; n += st['n']; npad += st['npad']
        body += '    s_endpgm\n'
        if o.iw: body = self.place_hops(body)
        hdr = open('cdna_kernels/' + NAME + '.s.ref').read().split('; Override launch')[0]
        txt = hdr + '; @launch grid=(256,1,1) block=(256,1,1) lds=163840\n'
        if o.diag: txt += '; stamps: ' + ' '.join(self.stn.keys()) + '\n'
        txt += f'''.amdgcn_target "amdgcn-amd-amdhsa--gfx950"
.text
.globl {NAME}_kernel
.p2align 8
.type {NAME}_kernel,@function
{NAME}_kernel:
{body}.section .rodata,"a"
.p2align 6
.amdhsa_kernel {NAME}_kernel
  .amdhsa_next_free_vgpr 512
  .amdhsa_next_free_sgpr 102
  .amdhsa_accum_offset 256
  .amdhsa_group_segment_fixed_size 0
  .amdhsa_kernarg_size 96
  .amdhsa_user_sgpr_count 2
  .amdhsa_user_sgpr_kernarg_segment_ptr 1
  .amdhsa_system_sgpr_workgroup_id_x 1
  .amdhsa_float_denorm_mode_32 3
.end_amdhsa_kernel
'''
        return txt, dict(n=n, npad=npad)

DEF = dict(cpf=9, apf=2, qpos=3, xfpos=2, d0=4, d0b=0, d0c=2, dT=2, dF=6, d1=6, d2=18, d2end=140, d3=6, d3b=2, d4=6, d4b=2, d5=2, lag=12, lag2=18, ppos=1, ppb=60, apos=0, nal=4, nh1=80, nh2=40, nh3=60, pfpos=144,
           xd0=8, wb0=52, wb1=116, trb0=2, es=3, es3=1, xp=2, rsp=56, rs=5, rb=2, rr=3, ipf=1, iw=1, wba=50, dbg=-1, pad=0, rt=0, probe=0, v=0,
           dl0=97, dl1=97, bub0=36, fa0=30, pa0=12, ca0=10, fb0=28, pb0=10, cb0=10,
           bub1=8, fa1=14, pa1=9, ca1=10, fb1=14, pb1=9, cb1=10)
def parser():
    ap = argparse.ArgumentParser()
    ap.add_argument('-o', default='cdna_kernels/' + NAME + '.s')
    ap.add_argument('--diag', action='store_true'); ap.add_argument('--stop', type=int, default=0)
    ap.add_argument('--stamps', default='')
    ap.add_argument('--mode', default='auto'); ap.add_argument('--padstamp', default='')
    ap.add_argument('--hm0', default='s'); ap.add_argument('--hm1', default='p')
    for k, d in DEF.items(): ap.add_argument('--' + k, type=int, default=d)
    return ap

if __name__ == '__main__':
    o = parser().parse_args()
    txt, st = G(o).gen()
    open(o.o, 'w').write(txt)
    print(o.o, st)
```

```python
import sys
from asmlib import *
from gen3 import v, ac, s, flat, NAME, STAMPS, WS_DIAG
def build(variants, out, raw=True):
    a = Asm(); names = ['start']
    a('s_cmp_ge_u32 s2, 0x100'); a('s_cbranch_scc1 L_end')
    a('s_memrealtime s[78:79]')
    a('s_load_dwordx2 s[26:27], s[0:1], 88')
    a('v_lshrrev_b32 v2, 6, v0'); a('v_and_b32 v1, 63, v0'); a('v_readfirstlane_b32 s66, v2')
    a('s_waitcnt lgkmcnt(0)')
    a('s_mov_b32 s52, s26'); a('s_and_b32 s53, s27, 0xffff'); a('s_mov_b32 s54, 0x10000000'); a('s_mov_b32 s55, 0x20000')
    a('s_mov_b32 s30, 0xbfb8aa3b')
    for i in range(3, 256): a(f'v_mov_b32 v{i}, 0x3c003c00')
    for i in range(256): a(f'v_accvgpr_write_b32 a{i}, v3')
    for e in range(8): a(f'v_lshlrev_b32 v{96+e}, 4, v1')
    a('s_lshl_b32 s31, s2, 16'); a('s_add_u32 s31, s31, 0x400000'); a('v_lshlrev_b32 v6, 4, v0')
    a('s_mov_b32 s40, 2')
    a('L_rep:')
    a('s_barrier')
    a(f's_memtime {s(STAMPS[0],2)}')
    for i, (n, body) in enumerate(variants):
        a('.p2align 4')
        a.add(body)
        a('s_waitcnt vmcnt(0) lgkmcnt(0)')
        a(f's_memtime {s(STAMPS[i+1],2)}'); names.append(n)
    a('s_sub_u32 s40, s40, 1'); a('s_cmp_lg_u32 s40, 0'); a('s_cbranch_scc1 L_rep')
    a('s_memrealtime s[74:75]'); a('s_waitcnt lgkmcnt(0)')
    a('s_nop 15')
    a('v_mov_b32 v20, 0')
    for i in range(len(names)): a(f'v_writelane_b32 v20, {s(STAMPS[i])}, {i}')
    a('v_writelane_b32 v20, s78, 30'); a('v_writelane_b32 v20, s74, 31')
    a('s_lshl_b32 s72, s2, 2'); a('s_add_u32 s72, s72, s66'); a('s_lshl_b32 s72, s72, 7'); a(f's_add_u32 s72, s72, {WS_DIAG}')
    a('v_lshlrev_b32 v21, 2, v1'); a('s_lshr_b64 exec, -1, 32')
    a('buffer_store_dword v20, v21, s[52:55], s72 offen')
    a('L_end:'); a('s_endpgm')
    body, st = finalize(a)
    txt = '; @launch grid=(256,1,1) block=(256,1,1) lds=163840\n; stamps: ' + ' '.join(names) + '\n'
    txt += f'''.amdgcn_target "amdgcn-amd-amdhsa--gfx950"
.text
.globl {NAME}_kernel
.p2align 8
.type {NAME}_kernel,@function
{NAME}_kernel:
{body}.section .rodata,"a"
.p2align 6
.amdhsa_kernel {NAME}_kernel
  .amdhsa_next_free_vgpr 512
  .amdhsa_next_free_sgpr 102
  .amdhsa_accum_offset 256
  .amdhsa_group_segment_fixed_size 0
  .amdhsa_kernarg_size 96
  .amdhsa_user_sgpr_count 2
  .amdhsa_user_sgpr_kernarg_segment_ptr 1
  .amdhsa_system_sgpr_workgroup_id_x 1
  .amdhsa_float_denorm_mode_32 3
.end_amdhsa_kernel
'''
    open(out, 'w').write(txt); print(out, st)

XB = 56; ET = 80; PK = 88; XA = 96
def epi(sl, e64=False, lit=True, store=True, grp=4):
    A0 = 24 + 16 * (sl & 1); L = []
    x = '_e64' if e64 else ''
    c = '0xbfb8aa3b' if lit else 's30'
    for q in range(16 // grp):
        t = ET + grp * (q & 1) if grp <= 4 else ET
        for e in range(grp): L.append(f'v_mul_f32{x} {v(t+e)}, {c}, {v(A0+grp*q+e)}')
        for e in range(grp): L.append(f'v_exp_f32{x} {v(t+e)}, {v(t+e)}')
        for e in range(grp): L.append(f'v_add_f32{x} {v(t+e)}, 1.0, {v(t+e)}')
        for e in range(grp): L.append(f'v_rcp_f32{x} {v(t+e)}, {v(t+e)}')
        for e in range(grp): L.append(f'v_mul_f32{x} {v(t+e)}, {v(t+e)}, {v(A0+grp*q+e)}')
        for e in range(grp // 2): L.append(f'v_cvt_pk_bf16_f32 {v(PK+(grp//2)*q+e)}, {v(t+2*e)}, {v(t+2*e+1)}')
        if store and (grp * (q + 1)) % 8 == 0:
            L.append(f'buffer_store_dwordx4 {v(PK+4*((grp*q)//8),4)}, v6, s[52:55], s31 offen')
    return L
def epi_pipe(sl):
    A0 = 24 + 16 * (sl & 1); G = [[] for _ in range(40)]
    for e in range(16):
        t = ET + (e & 7); g = 2 * e
        G[g].append(f'v_mul_f32 {v(t)}, s30, {v(A0+e)}')
        G[g + 1].insert(0, f'v_exp_f32 {v(t)}, {v(t)}')
        G[g + 2].append(f'v_add_f32 {v(t)}, 1.0, {v(t)}')
        G[g + 4].insert(0, f'v_rcp_f32 {v(t)}, {v(t)}')
        G[g + 5].append(f'v_mul_f32 {v(t)}, {v(t)}, {v(A0+e)}')
        if e & 1: G[g + 5].append(f'v_cvt_pk_bf16_f32 {v(PK+e//2)}, {v(t-1)}, {v(t)}')
        if e % 8 == 7: G[g + 7].append(f'buffer_store_dwordx4 {v(PK+4*(e//8),4)}, v6, s[52:55], s31 offen')
    return G
wt = lambda f: 2 if isinstance(f, str) and f.startswith(TRANS) else 1
def g1(ep, NB=6, pair=False, start=3, end=31, nsl=4):
    out = []
    rd = lambda i: f'ds_read_b128 {v(XB+4*(i%NB),4)}, {v(XA+(i&7))} offset:{(i%32)*1024}'
    lead = NB - 1 if not pair else NB - 2
    for i in range(lead): out.append(rd(i))
    for sl in range(nsl):
        main = []
        for ks in range(32):
            i = 32 * sl + ks; C = v(24 + 16 * (sl & 1), 16); it = []
            if not pair:
                it.append(rd(i + lead))
            elif ks % 2 == 0:
                it.append(f's_waitcnt lgkmcnt({lead-2})')
            it.append(f'v_mfma_f32_32x32x16_bf16 {C}, {ac(4*ks,4)}, {v(XB+4*(i%NB),4)}, {"0" if ks==0 else C}')
            if pair: it.append(rd(i + lead))
            main.append(it)
        out += interleave(main, ep(sl - 1), start=start, end=end, weight=wt) if ep else flat(main)
    return out
if __name__ == '__main__':
    V = [('noepi', g1(None)),
         ('noepi_pair', g1(None, pair=True)),
         ('base', g1(lambda sl: epi(sl))),
         ('sgpr', g1(lambda sl: epi(sl, lit=False))),
         ('e64', g1(lambda sl: epi(sl, e64=True, lit=False))),
         ('pair', g1(lambda sl: epi(sl, lit=False), pair=True)),
         ('pair_e64', g1(lambda sl: epi(sl, lit=False, e64=True), pair=True)),
         ('pair_2_32', g1(lambda sl: epi(sl, lit=False), pair=True, start=4, end=32)),
         ('pair_nost', g1(lambda sl: epi(sl, lit=False, store=False), pair=True)),
         ('pair_g2', g1(lambda sl: epi(sl, lit=False, grp=2), pair=True)),
         ('pair_g8', g1(lambda sl: epi(sl, lit=False, grp=8), pair=True)),
         ]
    build(V, 'mb1.s')
```

```python
from asmlib import *
from mbgen import *
def setup():
    L = ['s_and_b32 s32, s2, 7', 's_lshr_b32 s33, s2, 6', 's_lshl_b32 s32, s32, 2', 's_add_u32 s32, s32, s33', 's_mul_i32 s32, s32, 229376',
         's_mul_i32 s33, s66, 57344', 's_add_u32 s32, s32, s33', 's_add_u32 s32, s32, 0x800000', 'v_lshl_add_u32 v7, v1, 4, s32',
         'v_lshlrev_b32 v11, 4, v0', 'v_lshlrev_b32 v12, 4, v0']
    return L
def g2(NH=8, pos=1, red=None, HB=104, pre=False, rs=6, re=50):
    AC2 = [[24, 56], [40, 72]]
    def ld(i):
        p = [f's_mov_b32 s34, {(i>>2)*4096}'] if i % 4 == 0 else []
        return p + [f'buffer_load_dwordx4 {v(HB+4*(i%NH),4)}, v7, s[52:55], s34 offen offset:{(i&3)*1024} sc1']
    out = []
    lead = NH if pos == 1 else NH - 1
    for i in range(lead): out += ld(i)
    if pre: out += ['s_waitcnt vmcnt(0)', 's_barrier', f's_memtime {s(STAMPS[pre],2)}']
    for hf in range(2):
        main = []
        for ks in range(28):
            i = 28 * hf + ks
            for dt in range(2):
                C = v(AC2[hf][dt], 16)
                it = [f'v_mfma_f32_32x32x16_bf16 {C}, {ac(8*ks+4*dt,4)}, {v(HB+4*(i%NH),4)}, {"0" if ks==0 else C}']
                if dt == pos and i + lead < 56: it += ld(i + lead)
                main.append(it)
        out += interleave(main, red(0), start=rs, end=re) if (hf and red) else flat(main)
    return out
def red(hf, st=True):
    AC2 = [[24, 56], [40, 72]]
    L = []
    for dt in range(2):
        for q in range(4):
            L.append([f'v_xor_b32 v20, 0, v11', (f'ds_write_b128 v20, {v(AC2[hf][dt]+4*q,4)} offset:{(4*dt+q)*4096}', 'rw')])
    L.append([waitds('rw'), 's_barrier'])
    R = lambda w, e: AC2[0][w >> 1] + 8 * (w & 1) + e
    for w in range(4):
        for e in range(2):
            L.append(f'ds_read_b128 {v(R(w,4*e),4)}, v12 offset:{(2*w+e)*4096}')
    for w in (1, 2, 3):
        for e in range(8): L.append(f'v_add_f32 {v(R(0,e))}, {v(R(0,e))}, {v(R(w,e))}')
    for i in range(4): L.append(f'v_cvt_pk_bf16_f32 {v(R(1,i))}, {v(R(0,2*i))}, {v(R(0,2*i+1))}')
    if st: L.append(f'buffer_store_dwordx4 {v(R(1,0),4)}, v6, s[52:55], s31 offen')
    return L
V = [('init', setup() + g2()),
     ('n8p1', ['s_barrier'] + g2(8, 1)),
     ('n8p0', ['s_barrier'] + g2(8, 0)),
     ('n12p1', ['s_barrier'] + g2(12, 1)),
     ('n16p1', ['s_barrier'] + g2(16, 1)),
     ('n8red', ['s_barrier'] + g2(8, 1, red)),
     ('n8rednost', ['s_barrier'] + g2(8, 1, lambda h: red(h, False))),
     ('n12red', ['s_barrier'] + g2(12, 1, red)),
     ('n12red_late', ['s_barrier'] + g2(12, 1, red, rs=20, re=54)),
     ('dummy', []),
     ('n8pre', g2(8, 1, red, pre=10)),
     ('dummy2', []),
     ('n12pre', g2(12, 1, red, pre=12)),
     ('dummy3', []),
     ('n16pre', g2(16, 1, red, pre=14)),
     ('redonly', ['s_barrier'] + flat(red(1, False))),
     ]
build(V, 'mb4.s')
```

```python
from asmlib import *
from mbgen import *
from mbgen4 import setup
ET = 80; PK = 88
def epi_ops():
    A0 = 40; ops = []; cv = {}; ml = {}
    for e in range(16):
        t = ET + (e & 7); b = len(ops)
        ops.append((f'v_exp_f32 {v(t)}, -{v(A0+e)}', [cv[(e - 8) // 2]] if e >= 8 else [], 0))
        ops.append((f'v_add_f32 {v(t)}, 1.0, {v(t)}', [b], 0))
        ops.append((f'v_rcp_f32 {v(t)}, {v(t)}', [b + 1], 0))
        ops.append((f'v_mul_f32 {v(t)}, {v(t)}, {v(A0+e)}', [b + 2], 0)); ml[e] = b + 3
        if e & 1:
            cv[e // 2] = len(ops)
            ops.append((f'v_cvt_pk_bf16_f32 {v(PK+e//2)}, {v(t-1)}, {v(t)}', [ml[e - 1], ml[e]], 0))
        if e % 8 == 7:
            h = e // 8
            ops.append(([f'buffer_store_dwordx4 {v(PK+4*h,4)}, v6, s[52:55], s31 offen'], [cv[4 * h + k] for k in range(4)], 1))
    return ops
def g2(shape, NH, pre, epi, red, HB=104):
    n = 4 if shape == 16 else 2
    Gp = []
    for i in range(56):
        for dt in range(n):
            if shape == 16:
                st, ks = divmod(i, 14); C = v((24 if st % 2 == 0 else 56) + 4 * dt, 4)
                Gp.append(Gap(f'v_mfma_f32_16x16x32_bf16 {C}, {ac(16*ks+4*dt,4)}, {v(HB+4*(i%NH),4)}, {"0" if ks==0 else C}', 8))
            else:
                st, ks = divmod(i, 28); C = v([[24, 56], [176, 192]][st][dt], 16)
                Gp.append(Gap(f'v_mfma_f32_32x32x16_bf16 {C}, {ac(8*ks+4*dt,4)}, {v(HB+4*(i%NH),4)}, {"0" if ks==0 else C}', 24))
    ld = lambda i: (f'buffer_load_dwordx4 {v(HB+4*(i%NH),4)}, v7, s[52:55], s{60+(i>>2)} offen offset:{(i&3)*1024} sc1', f'h{i}')
    out = [forget('h')] + [f's_mov_b32 s{60+k}, {k*4096}' for k in range(14) if k != 6] + [ld(i) for i in range(NH)]
    out += ['s_waitcnt vmcnt(0)', 's_barrier', f's_memtime {s(STAMPS[pre],2)}']
    for i in range(1, 56): Gp[n * i - 1].s0.append(waitvm(f'h{i}'))
    for i in range(NH, 56): place(Gp, [ld(i)], n * (i - NH) + n - 1, force=True)
    if epi: print('epi end', place_dag(Gp, epi_ops(), 0)[0] / n * 2)
    def rd16(st):
        A = 24 if st % 2 == 0 else 56
        Wr = flat([['v_xor_b32 v20, 0, v11', (f'ds_write_b128 v20, {v(A+4*q,4)} offset:{q*4096}', 'rw'), 2] for q in range(4)])
        Rd = [(f'ds_read_b128 {v(A+4*w,4)}, v12 offset:{w*4096}', 'rr') for w in range(4)]
        Ar = [f'v_add_f32 {v(A+e)}, {v(A+e)}, {v(A+4*w+e)}' for w in (1, 2, 3) for e in range(4)] + [f'v_cvt_pk_bf16_f32 {v(A+4+i)}, {v(A+2*i)}, {v(A+2*i+1)}' for i in range(2)]
        return Wr + [3, waitds('rw'), 's_barrier'] + Rd + [6, waitds('rr')] + Ar + [f'buffer_store_dwordx2 {v(A+4,2)}, v13, s[52:55], s31 offen']
    def rd32(st):
        AC = [[24, 56], [176, 192]][st]
        Wr = flat([['v_xor_b32 v20, 0, v11', (f'ds_write_b128 v20, {v(AC[q>>2]+4*(q&3),4)} offset:{q*4096}', 'rw')] for q in range(8)])
        R = lambda w, e: [24, 56][w >> 1] + 8 * (w & 1) + e
        Rd = [(f'ds_read_b128 {v(R(w,4*e),4)}, v12 offset:{(2*w+e)*4096}', 'rr') for w in range(4) for e in range(2)]
        Ar = [f'v_add_f32 {v(R(0,e))}, {v(R(0,e))}, {v(R(w,e))}' for w in (1, 2, 3) for e in range(8)] + [f'v_cvt_pk_bf16_f32 {v(R(1,i))}, {v(R(0,2*i))}, {v(R(0,2*i+1))}' for i in range(4)]
        return Wr + [2, waitds('rw'), 's_barrier'] + Rd + [3, waitds('rr')] + Ar + [f'buffer_store_dwordx4 {v(R(1,0),4)}, v6, s[52:55], s31 offen']
    tail = []
    if red:
        if shape == 16:
            for st in range(3): print(' red', st, place(Gp, rd16(st), 56 * (st + 1) + 5) - 56 * (st + 1))
            tail = [x for x in rd16(3) if not isinstance(x, int)][:-1]
        else:
            place(Gp, rd32(0), 56 + 5); tail = [x for x in rd32(1) if not isinstance(x, int)][:-1]
    print(shape, NH, 'overflow', sum(max(0, -x.left) for x in Gp))
    return out + flat([x.emit() for x in Gp]) + [f's_memtime {s(STAMPS[pre+1],2)}'] + tail
def var(k, name, *a): return [(f'd{k}', []), (f'{name}_mf', []), (f'{name}_tail', g2(*a[:2], 3 * k + 2, *a[2:]))]
for fn, L in (('mb9a', [('s32n8', 32, 8, False, False), ('s32n8er', 32, 8, True, True), ('s32n10er', 32, 10, True, True), ('s32n14er', 32, 14, True, True), ('s16n8', 16, 8, False, False)]),
              ('mb9b', [('s16n8r', 16, 8, False, True), ('s16n8er', 16, 8, True, True), ('s16n10er', 16, 10, True, True), ('s16n14er', 16, 14, True, True), ('s16n14r', 16, 14, False, True)])):
    V = [('init', setup() + ['v_lshlrev_b32 v13, 3, v0', 's_mov_b32 s43, s66']) ]
    for k, x in enumerate(L): V += var(k, *x)
    build(V, fn + '.s')
    t = open(fn + '.s').read().replace('s66 offen', 's65 offen')
    open(fn + '.s', 'w').write(t)
    open(fn + 'r.s', 'w').write(t.replace('s_memtime', 's_memrealtime'))
```
